```python
import torch

def _softmax(x, axis=-1):
    return torch.softmax(x, dim=axis)
def _gelu(x):
    return torch.nn.functional.gelu(x, approximate="tanh")
def _silu(x):
    return torch.nn.functional.silu(x)
def _sigmoid(x):
    return torch.sigmoid(x)
def _layernorm(x, axis=-1, eps=1e-5):
    m = x.mean(dim=axis, keepdim=True)
    v = x.var(dim=axis, keepdim=True, unbiased=False)
    return (x - m) / torch.sqrt(v + eps)
def _scatter_add(tgt, idx, src, axis=0):
    return tgt.clone().index_add_(axis, idx, src)
def _segment_sum(src, seg, n):
    out = torch.zeros((n,) + src.shape[1:], dtype=src.dtype)
    return out.index_add_(0, seg, src)
def _pad(x, pw):
    flat = tuple(v for pair in reversed(pw) for v in pair)
    return torch.nn.functional.pad(x, flat)

kernel_name = 'sequential_preLN__ssm_conv_h3__moe_arch_mod__prompt'

def setup_inputs():

    _w = (lambda a: (lambda t: t.to(torch.bfloat16) if t.is_floating_point() else t)(torch.as_tensor(a)))
    def _A_setup():
        B, S, D = 1, 2048, 640
        ks = 4
        return {
            "q": _w((lambda *s: torch.randn(*s, dtype=torch.bfloat16) * 0.05)(B, S, D)),
            "k": _w((lambda *s: torch.randn(*s, dtype=torch.bfloat16) * 0.2)(B, S, D)),
            "v": _w((lambda *s: torch.randn(*s, dtype=torch.bfloat16) * 0.2)(B, S, D)),
            "shift_k": _w((lambda *s: torch.randn(*s, dtype=torch.bfloat16) * 0.2)(D, ks) * 0.5),
            "ssm_k": _w((lambda *s: torch.randn(*s, dtype=torch.bfloat16) * 0.8)(D, S) * (1.0 / S ** 0.5)),
            "ssm_D": _w((lambda *s: torch.randn(*s, dtype=torch.bfloat16) * 0.2)(D)),
        }
    _A_in = _A_setup()

    def _B_setup():
        B, S, D, F, C = 1, 2048, 640, 1536, 2
        return {
            "x": _w((lambda *s: torch.randn(*s, dtype=torch.bfloat16) * 0.05)(B, S, D)),
            "w_r": _w((lambda *s: torch.randn(*s, dtype=torch.bfloat16) * 0.05)(D)),
            "w_gate": _w((lambda *s: torch.randn(*s, dtype=torch.bfloat16) * 0.05)(D, F)),
            "w_up": _w((lambda *s: torch.randn(*s, dtype=torch.bfloat16) * 0.05)(D, F)),
            "w_down": _w((lambda *s: torch.randn(*s, dtype=torch.bfloat16) * 0.05)(F, D)),
        }
    _B_in = _B_setup()

    return {
        "A_q": _A_in["q"],
        "A_k": _A_in["k"],
        "A_v": _A_in["v"],
        "A_shift_k": _A_in["shift_k"],
        "A_ssm_k": _A_in["ssm_k"],
        "A_ssm_D": _A_in["ssm_D"],
        "B_x": _B_in["x"],
        "B_w_r": _B_in["w_r"],
        "B_w_gate": _B_in["w_gate"],
        "B_w_up": _B_in["w_up"],
        "B_w_down": _B_in["w_down"],
    }

def reference(A_q, A_k, A_v, A_shift_k, A_ssm_k, A_ssm_D, B_x, B_w_r, B_w_gate, B_w_up, B_w_down):
    def _A_ref(q, k, v, shift_k, ssm_k, ssm_D):
        B, S, D = q.shape
        ks = shift_k.shape[-1]
        k_pad = _pad(k, ((0, 0), (ks - 1, 0), (0, 0)))
        k_shift = torch.zeros_like(k)
        for t in range(ks):
            k_shift = k_shift + k_pad[:, t:t + S, :] * shift_k[:, ks - 1 - t][None, None, :]
        kv = k_shift * v
        L = 2 * S
        kv_pad = _pad(kv, ((0, 0), (0, S), (0, 0)))
        kf_pad = _pad(ssm_k, ((0, 0), (0, S)))
        kv_f = (lambda x, axes=(-2,-1): torch.fft.rfft2(x.float(), dim=axes))(kv_pad[:, None, :, :], axes=(1, 2))
        kf_f = (lambda x, axes=(-2,-1): torch.fft.rfft2(x.float(), dim=axes))(kf_pad[:, None, :], axes=(1, 2))
        kf_f = (lambda x, *d: x.permute(*d))(kf_f, 1, 2, 0)
        y_f = kv_f * kf_f[None, :, :, :]
        y = (lambda x, s, axes=(-2,-1): torch.fft.irfft2(x, s=s, dim=axes).to(torch.bfloat16))(y_f, (1, L), axes=(1, 2))[:, 0, :S, :]
        y = y + kv * ssm_D[None, None, :]
        return q * y

    def _B_ref(x, w_r, w_gate, w_up, w_down):
        B, S, D = x.shape
        C = 2
        r = x @ w_r
        idx = torch.argsort(-r, axis=-1)[:, :C]
        idx_e = (lambda x, n, axis: torch.repeat_interleave(x, n, dim=axis))(idx.reshape(B, C, 1), D, axis=2)
        x_sel = (lambda x, i, axis: torch.take_along_dim(x, i, dim=axis))(x, idx_e, axis=1)
        g = _silu(x_sel @ w_gate)
        u = x_sel @ w_up
        y = (g * u) @ w_down
        r_sel = _sigmoid((lambda x, i, axis: torch.take_along_dim(x, i, dim=axis))(r, idx, axis=1))
        y = y * r_sel.reshape(B, C, 1)
        b_off = (torch.arange(B) * S).reshape(B, 1)
        flat_idx = (idx + b_off).reshape(B * C)
        zero = (x * 0.0).reshape(B * S, D)
        upd = _scatter_add(zero, flat_idx, y.reshape(B * C, D), axis=0)
        return x + upd.reshape(B, S, D)

    x = A_q
    h = x + _A_ref(_layernorm(x, axis=-1), A_k, A_v, A_shift_k, A_ssm_k, A_ssm_D)
    h2 = h + _B_ref(_layernorm(h, axis=-1), B_w_r, B_w_gate, B_w_up, B_w_down)
    return h2
```

```python
import re

REG = re.compile(r'(?<![\w.])([vas])(?:(\d+)|\[(\d+):(\d+)\])(?![\w])')

def regs_of(tok):
    out = set()
    t = tok.strip()
    if t in ('vcc', 'vcc_lo', 'vcc_hi'):
        return {('s', 106), ('s', 107)}
    if t in ('exec', 'exec_lo', 'exec_hi'):
        return {('s', 126), ('s', 127)}
    if t == 'm0':
        return {('s', 124)}
    for m in REG.finditer(t):
        f = m.group(1)
        if m.group(2) is not None:
            out.add((f, int(m.group(2))))
        else:
            for i in range(int(m.group(3)), int(m.group(4)) + 1):
                out.add((f, i))
    return out

TRANS = ('v_exp_', 'v_log_', 'v_rcp_', 'v_rsq_', 'v_sqrt_', 'v_sin_', 'v_cos_')
VCC = {('s', 106), ('s', 107)}

class Ins:
    def __init__(self, text):
        self.text = text
        body = text.split(';')[0].strip()
        parts = body.split(None, 1)
        self.op = parts[0]
        rest = parts[1] if len(parts) > 1 else ''
        ops, depth, cur = [], 0, ''
        for ch in rest:
            if ch in '[(':
                depth += 1
            if ch in '])':
                depth -= 1
            if ch == ',' and depth == 0:
                ops.append(cur.strip()); cur = ''
            else:
                cur += ch
        if cur.strip():
            ops.append(cur.strip())
        self.mods = ''
        if ops:
            last = ops[-1].split(None, 1)
            ops[-1] = last[0]
            self.mods = last[1] if len(last) > 1 else ''
        self.ops = ops
        op = self.op
        self.mfma = op.startswith('v_mfma')
        self.valu = op.startswith('v_') and not self.mfma
        self.trans = op.startswith(TRANS)
        self.dot = op.startswith('v_dot')
        self.dpp = '_dpp' in op or 'quad_perm' in self.mods or 'row_' in self.mods
        self.perml = op.startswith('v_permlane')
        self.rdlane = op.startswith(('v_readlane', 'v_readfirstlane'))
        self.wrlane = op.startswith('v_writelane')
        self.vmem = op.startswith(('buffer_', 'global_'))
        self.ds = op.startswith('ds_')
        self.branch = op.startswith(('s_branch', 's_cbranch'))
        self.uncond = op in ('s_branch', 's_endpgm')
        self.states = 1
        if op == 's_nop':
            self.states = int(ops[0], 0) + 1
        R = [regs_of(o) for o in ops]
        w, r = set(), set()
        self.srcC = set(); self.srcAB = set(); self.stdata = set()
        if self.mfma:
            w = R[0]; self.srcAB = R[1] | R[2]; self.srcC = R[3]; r = self.srcAB | self.srcC
        elif self.valu:
            if op.startswith('v_cmp'):
                w = R[0]; r = set().union(*R[1:])
            elif self.perml:
                w = R[0] | R[1]; r = R[0] | R[1]
            elif op.startswith(('v_add_co', 'v_sub_co', 'v_addc_co', 'v_subb_co', 'v_subrev_co')):
                w = R[0] | R[1]; r = set().union(*R[2:])
            else:
                w = R[0]; r = set().union(*R[1:]) if len(R) > 1 else set()
                if op.startswith(('v_fmac', 'v_dot2c', 'v_writelane')) or self.dpp or 'd16' in op:
                    r |= R[0]
                if self.dot:
                    self.srcC = R[0] if op.startswith('v_dot2c') else R[3]
                    self.srcAB = R[1] | R[2]
        elif self.vmem:
            isld = '_load' in op
            if isld and ' lds' in (' ' + self.mods):
                r = set().union(*R) | {('s', 124)}
            elif isld:
                w = R[0]; r = set().union(*R[1:])
                if 'd16' in op: r |= R[0]
            elif op.startswith('buffer_'):
                if R:
                    r = set().union(*R)
                    if 'atomic' in op and 'sc0' in self.mods: w = R[0]
                    if op.endswith(('x3', 'x4')): self.stdata = R[0]
            else:
                r = set().union(*R)
                if op.endswith(('x3', 'x4')): self.stdata = R[1]
        elif self.ds:
            if op.startswith(('ds_read', 'ds_bpermute', 'ds_permute', 'ds_swizzle')):
                w = R[0]; r = set().union(*R[1:])
            else:
                r = set().union(*R)
        elif op.startswith('s_'):
            if op.startswith(('s_cmp', 's_bitcmp', 's_waitcnt', 's_nop', 's_barrier', 's_sleep', 's_endpgm', 's_setprio')) or self.branch:
                r = set().union(*R) if (R and not self.branch) else set()
            else:
                w = R[0] if R else set(); r = set().union(*R[1:]) if len(R) > 1 else set()
                if 'saveexec' in op: w = w | {('s', 126), ('s', 127)}
        self.w, self.r = w, r

def isv(x): return x[0] in 'va'
def iss(x): return x[0] == 's'

def need(p, c):
    n = 0
    pwv = {x for x in p.w if isv(x)}
    pws = {x for x in p.w if iss(x)}
    if p.valu:
        if pwv & c.r:
            if c.valu and c.dpp: n = max(n, 2)
            if c.perml: n = max(n, 2)
            if c.rdlane: n = max(n, 1)
            if c.mfma: n = max(n, 2)
            if p.trans and c.valu: n = max(n, 1)
        if pws & c.r:
            if c.valu: n = max(n, 2)
            if (c.rdlane or c.wrlane): n = max(n, 4)
            if c.vmem: n = max(n, 5)
        if p.dot:
            if c.dot and c.op == p.op:
                if pwv & c.srcAB: n = max(n, 3)
            elif pwv & (c.r | c.w):
                n = max(n, 3)
    if p.mfma:
        big = '32x32' in p.op
        if c.mfma:
            if pwv & c.srcAB: n = max(n, 12 if big else 8)
            if pwv & c.srcC and c.srcC != p.w: n = max(n, 10 if big else 6)
            if pwv & c.w and not (c.srcC == p.w and c.w == p.w) and c.w != c.srcC: n = max(n, 10 if big else 6)
        else:
            if pwv & (c.r | c.w): n = max(n, 12 if big else 8)
            if c.valu and (p.srcC & c.w): n = max(n, 7 if big else 3)
    if p.stdata and (p.stdata & c.w):
        n = max(n, 2)
    if (not p.valu) and ('s', 124) in p.w and ('s', 124) in c.r and (c.vmem or c.ds):
        n = max(n, 1)
    return n

class Asm:
    def __init__(self):
        self.items = []
    def __call__(self, text):
        for line in text.split('\n'):
            s = line.strip()
            if not s: continue
            if s.startswith(';'):
                self.items.append(('c', s))
            elif re.match(r'^[\w.$]+:$', s):
                self.items.append(('l', s[:-1]))
            elif s.startswith('.'):
                self.items.append(('d', s))
            else:
                self.items.append(('i', Ins(s)))
    def pad(self, maxlook=14):
        changed = True
        total = 0
        while changed:
            changed = False
            items = self.items
            lab = {it[1]: i for i, it in enumerate(items) if it[0] == 'l'}
            br = {}
            for i, it in enumerate(items):
                if it[0] == 'i' and it[1].branch:
                    br.setdefault(it[1].ops[0], []).append(i)
            for i, it in enumerate(items):
                if it[0] != 'i': continue
                c = it[1]
                if c.op == 's_nop': continue
                worst = 0
                stack = [(i - 1, 0)]
                seen = set()
                while stack:
                    j, dist = stack.pop()
                    while j >= 0 and dist < maxlook:
                        if (j, dist) in seen: break
                        seen.add((j, dist))
                        t = items[j]
                        if t[0] == 'l':
                            for b in br.get(t[1], []):
                                stack.append((b, dist))
                            k = j - 1
                            while k >= 0 and items[k][0] not in ('i', 'l'): k -= 1
                            if k >= 0 and items[k][0] == 'i' and items[k][1].uncond: break
                            j -= 1; continue
                        if t[0] == 'i':
                            p = t[1]
                            n = need(p, c)
                            if n > dist: worst = max(worst, n - dist)
                            dist += p.states
                        j -= 1
                if worst > 0:
                    items.insert(i, ('i', Ins(f's_nop {worst-1}')))
                    total += 1
                    changed = True
                    break
        return total
    def text(self):
        out = []
        for k, v in self.items:
            if k == 'i': out.append('    ' + v.text)
            elif k == 'l': out.append(v + ':')
            else: out.append(v)
        return '\n'.join(out) + '\n'
```

```python
import sys, os
sys.path.insert(0, os.path.dirname(os.path.abspath(__file__)))
from asmlib import Asm

NAME = "sequential_preLN__ssm_conv_h3__moe_arch_mod__prompt_kernel"

U_OFF  = 0x000000
Y_OFF  = 0x280000
G_OFF  = 0x500000
R_OFF  = 0x510000
H_OFF  = 0x5B0000
A_OFF  = 0x650000
D_OFF  = 0x660000
T_OFF  = 0x700000
WS_SIZE = 0x800000

KC_STRIDE = 4160
L_K  = 0
L_U  = 66560
UQ   = 1312
L_P0 = L_U + 4*5248
L_Y  = L_P0 + 10240
L_P2 = L_Y + 4*4352
L_S  = L_P2 + 10240
LDS_SIZE = L_S + 2048

SPIN = 40000

def v(i, n=1): return f"v{i}" if n == 1 else f"v[{i}:{i+n-1}]"
def a(i, n=1): return f"a{i}" if n == 1 else f"a[{i}:{i+n-1}]"
def s(i, n=1): return f"s{i}" if n == 1 else f"s[{i}:{i+n-1}]"

def build(opt):
    A = Asm()
    STAMP = opt.get('stamp', 0)
    EXACT = opt.get('exact', 1)
    nst = [0]
    def stamp(tag):
        if STAMP:
            k = nst[0]; nst[0] += 1
            A(f"s_memrealtime s[{STAMPTMP}:{STAMPTMP+1}]\ns_waitcnt lgkmcnt(0)\nv_writelane_b32 v{VSTAMP}, s{STAMPTMP}, {tag}")
    STAMPTMP = 98
    VSTAMP = 15

    SK, SV, SWS, SKR, SOUT, SDBG, SX = 36, 40, 44, 48, 52, 56, 60
    sW, sG, sM, sMASK, sT = 3, 4, 5, 6, 7
    sTAU, sCH, sDLO, sDHI, sCNT, sT2, sT3, sT4 = 64, 65, 66, 67, 68, 69, 70, 71
    sUO, sYO, sJ, sTB16 = 72, 73, 74, 75
    sE0 = 76
    sP0 = 78
    sP1 = 80
    sK1, sK2 = 82, 83
    sR0 = 84
    sPC = 88

    def srd(base, ptr, nbytes):
        A(f"s_mov_b32 s{base}, s{ptr}\ns_mov_b32 s{base+1}, s{ptr+1}\ns_mov_b32 s{base+2}, {nbytes}\ns_mov_b32 s{base+3}, 0x00020000")

    A(f"{NAME}:")
    A(f"""
    s_cmp_ge_u32 s2, 256
    s_cbranch_scc1 L_end
    s_load_dwordx16 s[8:23], s[0:1], 0
    s_load_dwordx8 s[24:31], s[0:1], 64
    s_load_dwordx4 s[32:35], s[0:1], 96
    """)
    if STAMP:
        A(f"v_mov_b32 v{VSTAMP}, 0\ns_memrealtime s[{STAMPTMP}:{STAMPTMP+1}]")
    A(f"""
    s_getpc_b64 s[{sPC}:{sPC+1}]
    L_pc:
    s_mov_b32 s{sPC+2}, L_end-L_pc
    s_mov_b32 s{sPC+3}, 0x00020000
    s_and_b32 s{sG}, s2, 7
    s_lshr_b32 s{sM}, s2, 3
    s_and_b32 s{sT}, s{sM}, 3
    s_lshl_b32 s{sT}, s{sT}, 12
    v_lshlrev_b32 v2, 4, v0
    buffer_load_dword v3, v2, s[{sPC}:{sPC+3}], s{sT} offen
    v_and_b32 v1, 63, v0
    v_lshrrev_b32 v2, 6, v0
    s_mov_b32 s{sMASK}, 0xffff0000
    v_readfirstlane_b32 s{sW}, v2
    """)
    vCG, vRG = 2, 3
    vCG, vRG = 4, 5
    vA0, vA2, vA3, vB0, vB2, vB3 = 6, 7, 8, 9, 10, 11
    vSH0, vSH1 = 12, 13
    vUA = 14
    A(f"""
    v_and_b32 v{vCG}, 7, v0
    v_lshrrev_b32 v{vRG}, 3, v0
    s_mul_i32 s{sT}, s{sM}, {64*1280}
    s_mul_i32 s{sT2}, s{sG}, 160
    s_add_u32 s{sT}, s{sT}, s{sT2}
    v_mul_u32_u24 v{vA0}, 2560, v{vRG}
    v_add_u32 v{vA0}, s{sT}, v{vA0}
    v_lshl_add_u32 v{vB0}, v{vCG}, 2, v{vA0}
    v_add_u32 v{vB0}, 128, v{vB0}
    v_lshl_add_u32 v{vA0}, v{vCG}, 4, v{vA0}
    v_subrev_u32 v{vA2}, 2560, v{vA0}
    v_subrev_u32 v{vA3}, 3840, v{vA0}
    v_subrev_u32 v{vB2}, 2560, v{vB0}
    v_subrev_u32 v{vB3}, 3840, v{vB0}
    s_mul_i32 s{sT2}, s{sG}, 640
    v_lshl_add_u32 v{vSH0}, v{vCG}, 6, s{sT2}
    s_add_u32 s{sT2}, s{sT2}, 512
    v_lshl_add_u32 v{vSH1}, v{vCG}, 4, s{sT2}
    v_lshlrev_b32 v{vUA}, 12, v{vRG}
    v_lshl_add_u32 v{vUA}, v{vCG}, 4, v{vUA}
    s_mul_i32 s{sUO}, s{sG}, {80*4096}
    s_lshl_b32 s{sT}, s{sM}, 7
    s_add_u32 s{sUO}, s{sUO}, s{sT}
    s_waitcnt lgkmcnt(0)
    """)
    if STAMP: A(f"v_writelane_b32 v{VSTAMP}, s{STAMPTMP}, 0")
    srd(SK, 10, 2621440); srd(SV, 12, 2621440); srd(SWS, 34, WS_SIZE)
    KX4, KX1, VX4, VX1, SHR, SHC, ACC0 = 148, 168, 174, 182, 184, 204, 32
    PZ = 244
    A(f"v_mov_b32 v{PZ}, -1\nv_mov_b32 v{PZ+1}, -1\nv_mov_b32 v{PZ+2}, -1\nv_mov_b32 v{PZ+3}, -1")
    for i in range(4):
        A(f"global_load_dwordx4 {v(SHR+4*i,4)}, v{vSH0}, s[14:15] offset:{16*i}")
    A(f"global_load_dwordx4 {v(SHR+16,4)}, v{vSH1}, s[14:15]")
    def u_stores(regs, nm):
        A(f"buffer_store_dwordx4 {v(regs[0],4)}, v{vUA}, s[{SWS}:{SWS+3}], s{sUO} offen sc1")
        A(f"s_add_u32 s{sT}, s{sUO}, {32*4096}")
        A(f"buffer_store_dwordx4 {v(regs[1],4)}, v{vUA}, s[{SWS}:{SWS+3}], s{sT} offen sc1")
        A(f"s_add_u32 s{sT}, s{sUO}, {64*4096}")
        A(f"s_cmp_lt_u32 s{sW}, 2\ns_cselect_b32 s{sT}, s{sT}, {WS_SIZE}")
        A(f"buffer_store_dwordx4 {v(regs[2],4)}, v{vUA}, s[{SWS}:{SWS+3}], s{sT} offen sc1")
    u_stores([PZ, PZ, PZ], 'p')
    def kx4(r): return KX4 + 4*r
    def kx1(r): return KX1 + r
    A(f"""
    buffer_load_dwordx4 {v(VX4,4)}, v{vA0}, s[{SV}:{SV+3}], 0 offen
    buffer_load_dwordx4 {v(VX4+4,4)}, v{vA0}, s[{SV}:{SV+3}], 0 offen offset:1280
    buffer_load_dwordx4 {v(kx4(3),4)}, v{vA0}, s[{SK}:{SK+3}], 0 offen
    buffer_load_dwordx4 {v(kx4(4),4)}, v{vA0}, s[{SK}:{SK+3}], 0 offen offset:1280
    buffer_load_dword v{VX1}, v{vB0}, s[{SV}:{SV+3}], 0 offen
    buffer_load_dword v{VX1+1}, v{vB0}, s[{SV}:{SV+3}], 0 offen offset:1280
    buffer_load_dword v{kx1(3)}, v{vB0}, s[{SK}:{SK+3}], 0 offen
    buffer_load_dword v{kx1(4)}, v{vB0}, s[{SK}:{SK+3}], 0 offen offset:1280
    buffer_load_dwordx4 {v(kx4(0),4)}, v{vA3}, s[{SK}:{SK+3}], 0 offen
    buffer_load_dword v{kx1(0)}, v{vB3}, s[{SK}:{SK+3}], 0 offen
    buffer_load_dwordx4 {v(kx4(1),4)}, v{vA2}, s[{SK}:{SK+3}], 0 offen
    buffer_load_dwordx4 {v(kx4(2),4)}, v{vA2}, s[{SK}:{SK+3}], 0 offen offset:1280
    buffer_load_dword v{kx1(1)}, v{vB2}, s[{SK}:{SK+3}], 0 offen
    buffer_load_dword v{kx1(2)}, v{vB2}, s[{SK}:{SK+3}], 0 offen offset:1280
    """)
    KL = 76
    A(f"""
    s_mul_i32 s{sCH}, s{sG}, 80
    s_lshl_b32 s{sT}, s{sM}, 2
    s_add_u32 s{sCH}, s{sCH}, s{sT}
    s_add_u32 s{sCH}, s{sCH}, s{sW}
    s_cmp_lt_u32 s{sM}, 20
    s_cselect_b32 s{sCH}, s{sCH}, 0
    s_cselect_b32 s{SKR+2}, 4096, 0
    s_lshl_b32 s{sT}, s{sCH}, 12
    s_add_u32 s{SKR}, s16, s{sT}
    s_addc_u32 s{SKR+1}, s17, 0
    s_mov_b32 s{SKR+3}, 0x00020000
    s_lshr_b32 s{sT}, s{sCH}, 1
    s_lshl_b32 s{sT}, s{sT}, 2
    s_load_dword s{sDLO}, s[18:19], s{sT}
    v_lshlrev_b32 v{vA2}, 4, v1
    v_subrev_u32 v{vA3}, 64, v{vA2}
    v_subrev_u32 v{vB2}, 48, v{vA2}
    v_add_u32 v{vB3}, 960, v{vA2}
    buffer_load_dwordx4 {v(KL,4)}, v{vA3}, s[{SKR}:{SKR+3}], 0 offen
    buffer_load_dwordx2 {v(KL+4,2)}, v{vB2}, s[{SKR}:{SKR+3}], 0 offen
    """)
    for it in range(1, 5):
        A(f"buffer_load_dwordx4 {v(KL+6*it,4)}, v{vB3}, s[{SKR}:{SKR+3}], 0 offen offset:{1024*(it-1)}")
        A(f"buffer_load_dwordx2 {v(KL+6*it+4,2)}, v{vB3}, s[{SKR}:{SKR+3}], 0 offen offset:{1024*(it-1)+16}")
    XR0, XS0, XR1, XS1, WR4, WR1 = 16, 20, 22, 21, 28, 26
    vXA, vXB = 248, 249
    srd(SX, 8, 2621440); srd(SOUT, 30, 2621440); srd(SDBG, 32, 256)
    A(f"""
    s_add_u32 s{sT}, s{sM}, 12
    s_and_b32 s{sT}, s{sT}, 31
    s_lshr_b32 s{sTB16}, s{sT}, 1
    s_lshl_b32 s{sTB16}, s{sTB16}, 3
    s_add_u32 s{sTB16}, s{sTB16}, s{sG}
    s_and_b32 s{sT}, s{sT}, 1
    s_lshl_b32 s{sTAU}, s{sTB16}, 1
    s_add_u32 s{sTAU}, s{sTAU}, s{sT}
    s_lshl_b32 s{sT2}, s{sTAU}, 2
    s_add_u32 s{sT2}, s{sT2}, s{sW}
    s_mul_i32 s{sT2}, s{sT2}, 2560
    v_lshl_add_u32 v{vXA}, v1, 4, s{sT2}
    s_add_u32 s{sT2}, s{sT2}, 1024
    v_lshl_add_u32 v{vXB}, v1, 2, s{sT2}
    """)
    A(f"s_waitcnt vmcnt({3+14+10})")
    for c in range(10):
        for h in range(2):
            r = SHR + 2*c + h
            d = SHC + 4*c + 2*h
            if c % 2 == 0:
                A(f"v_and_b32 v{d}, 0xffff, v{r}\nv_lshrrev_b32 v{d+1}, 16, v{r}")
            else:
                A(f"v_lshlrev_b32 v{d}, 16, v{r}\nv_and_b32 v{d+1}, s{sMASK}, v{r}")
    vL0, vL1 = vA3, vB2
    A(f"""
    v_xor_b32 v{vA2}, 3, v{vRG}
    v_lshrrev_b32 v{vB3}, 2, v{vRG}
    v_xor_b32 v{vB3}, v{vB3}, v{vCG}
    v_and_b32 v{vA2}, 3, v{vA2}
    v_lshlrev_b32 v{vA2}, 2, v{vA2}
    v_lshl_add_u32 v{vA2}, v{vB3}, 4, v{vA2}
    v_add_u32 v{vA2}, {L_P0}, v{vA2}
    v_lshl_add_u32 v{vL0}, v{vCG}, 10, v{vA2}
    v_lshl_add_u32 v{vL1}, v{vCG}, 8, v{vA2}
    v_add_u32 v{vL1}, {64*128}, v{vL1}
    """)
    A(f"""
    s_waitcnt vmcnt({14+10})
    s_barrier
    s_lshl_b32 s{sT}, s{sG}, 2
    s_cmp_eq_u32 s{sW}, 0
    s_cselect_b32 s{sT}, s{sT}, 256
    v_mov_b32 v2, 1
    s_mov_b64 exec, 1
    buffer_atomic_add v2, off, s[{SDBG}:{SDBG+3}], s{sT} sc1
    s_mov_b64 exec, -1
    """)
    stamp(1)
    A(f"s_waitcnt vmcnt({10+1})")
    stamp(2)
    def kreg(r, p): return kx4(r) + p if p < 4 else kx1(r)
    def vreg(t, p): return VX4 + 4*t + p if p < 4 else VX1 + t
    TMP = 52
    for p0 in ((0, 1), (2, 3), (4,)):
        accs = []
        for p in p0:
            for b in range(2):
                for t in range(2):
                    accs.append((p, b, t, ACC0 + 4*p + 2*b + t))
        for tap in range(4):
            for (p, b, t, acc) in accs:
                kr = kreg(3 + t - tap, p)
                w = SHC + 4*(2*p + b) + tap
                if tap == 0: A(f"v_dot2_f32_bf16 v{acc}, v{kr}, v{w}, 0")
                else: A(f"v_dot2c_f32_bf16 v{acc}, v{kr}, v{w}")
        for (p, b, t, acc) in accs:
            tr = TMP + (acc - ACC0) % 8
            if b == 0: A(f"v_lshlrev_b32 v{tr}, 16, v{vreg(t,p)}")
            else: A(f"v_and_b32 v{tr}, s{sMASK}, v{vreg(t,p)}")
        for (p, b, t, acc) in accs:
            tr = TMP + (acc - ACC0) % 8
            A(f"v_mul_f32 v{acc}, v{acc}, v{tr}")
        for p in p0:
            for b in range(2):
                acc = ACC0 + 4*p + 2*b
                A(f"v_cvt_pk_bf16_f32 v{acc}, v{acc+1}, v{acc}")
                if p < 4: A(f"ds_write_b32 v{vL0}, v{acc} offset:{(2*p+b)*128}")
                else: A(f"ds_write_b32 v{vL1}, v{acc} offset:{b*128}")
    RB = 64
    A(f"""
    v_and_b32 v{vA2}, 7, v0
    v_xor_b32 v{vB3}, s{sW}, v{vA2}
    v_lshlrev_b32 v{vA0}, 7, v{vRG}
    v_add_u32 v{vA0}, {L_P0}, v{vA0}
    v_lshl_add_u32 v{vB0}, v{vB3}, 4, v{vA0}
    v_xor_b32 v{vB3}, 4, v{vB3}
    v_lshl_add_u32 v{vB3}, v{vB3}, 4, v{vA0}
    v_bfe_u32 v{vSH0}, v0, 4, 3
    v_xor_b32 v{vA2}, v{vSH0}, v{vA2}
    v_lshl_add_u32 v{vA2}, v{vA2}, 4, v{vA0}
    s_waitcnt lgkmcnt(0)
    s_barrier
    ds_read_b128 {v(RB,4)}, v{vB0}
    ds_read_b128 {v(RB+4,4)}, v{vB3} offset:{32*128}
    ds_read_b128 {v(RB+8,4)}, v{vA2} offset:{64*128}
    s_waitcnt lgkmcnt(0)
    """)
    u_stores([RB, RB+4, RB+8], 'd')
    stamp(3)
    A(f"""
    buffer_load_dwordx4 {v(XR0,4)}, v{vXA}, s[{SX}:{SX+3}], 0 offen
    buffer_load_dword v{XS0}, v{vXB}, s[{SX}:{SX+3}], 0 offen
    buffer_load_dwordx4 {v(XR1,4)}, v{vXA}, s[{SX}:{SX+3}], 0 offen offset:1280
    buffer_load_dword v{XS1}, v{vXB}, s[{SX}:{SX+3}], 0 offen offset:1280
    v_lshlrev_b32 v{vA2}, 4, v1
    v_lshlrev_b32 v{vA0}, 2, v1
    global_load_dwordx4 {v(WR4,4)}, v{vA2}, s[22:23]
    global_load_dword v{WR1}, v{vA0}, s[22:23] offset:1024
    """)
    A(f"""
    v_lshlrev_b32 v{vA0}, 4, v0
    s_mul_i32 s{sT}, s2, 10240
    s_add_u32 s{sT}, s{sT}, {Y_OFF}
    buffer_store_dwordx4 {v(PZ,4)}, v{vA0}, s[{SWS}:{SWS+3}], s{sT} offen sc1
    s_add_u32 s{sT2}, s{sT}, 4096
    buffer_store_dwordx4 {v(PZ,4)}, v{vA0}, s[{SWS}:{SWS+3}], s{sT2} offen sc1
    s_add_u32 s{sT2}, s{sT}, 8192
    s_mul_i32 s{sT3}, s{sTAU}, 2560
    s_add_u32 s{sT3}, s{sT3}, {R_OFF} - 2048
    s_cmp_lt_u32 s{sW}, 2
    s_cselect_b32 s{sT2}, s{sT2}, s{sT3}
    buffer_store_dwordx4 {v(PZ,4)}, v{vA0}, s[{SWS}:{SWS+3}], s{sT2} offen sc1
    """)
    A(f"""
    v_lshrrev_b32 v{vB0}, 3, v1
    s_add_u32 s{sT3}, s{sT3}, 4096
    v_mov_b32 v{vB3}, s{sT3}
    s_lshl_b32 s{sT}, s{sTAU}, 7
    s_add_u32 s{sT2}, s{sT}, {G_OFF} - 512
    v_mov_b32 v{vA2}, s{sT2}
    v_cmp_eq_u32 vcc, 4, v{vB0}
    v_cndmask_b32 v{vB3}, v{vB3}, v{vA2}, vcc
    s_add_u32 s{sT2}, s{sT}, {D_OFF} - 640
    v_mov_b32 v{vA2}, s{sT2}
    v_cmp_eq_u32 vcc, 5, v{vB0}
    v_cndmask_b32 v{vB3}, v{vB3}, v{vA2}, vcc
    s_mul_i32 s{sJ}, s{sG}, 12
    s_add_u32 s{sJ}, s{sJ}, s{sM}
    s_sub_u32 s{sJ}, s{sJ}, 20
    s_lshl_b32 s{sT}, s{sJ}, 7
    s_add_u32 s{sT2}, s{sT}, {A_OFF} - 768
    s_cmp_ge_u32 s{sM}, 20
    s_cselect_b32 s{sT2}, s{sT2}, {WS_SIZE}
    v_mov_b32 v{vA2}, s{sT2}
    v_cmp_eq_u32 vcc, 6, v{vB0}
    v_cndmask_b32 v{vB3}, v{vB3}, v{vA2}, vcc
    v_mov_b32 v{vA2}, {WS_SIZE}
    v_cmp_eq_u32 vcc, 7, v{vB0}
    v_cndmask_b32 v{vB3}, v{vB3}, v{vA2}, vcc
    v_lshl_add_u32 v{vB3}, v1, 4, v{vB3}
    s_cmp_eq_u32 s{sW}, 0
    s_cselect_b32 s{sT}, 0, {WS_SIZE}
    buffer_store_dwordx4 {v(PZ,4)}, v{vB3}, s[{SWS}:{SWS+3}], s{sT} offen sc1
    s_cmp_ge_u32 s{sM}, 20
    s_cbranch_scc1 L_ffn_prep
    """)

    def b1_arrive():
        A(f"""
        s_waitcnt vmcnt(0)
        s_barrier
        s_lshl_b32 s{sT}, s{sG}, 2
        s_add_u32 s{sT}, s{sT}, 128
        s_cmp_eq_u32 s{sW}, 0
        s_cselect_b32 s{sT}, s{sT}, 256
        v_mov_b32 v2, 1
        s_mov_b64 exec, 1
        buffer_atomic_add v2, off, s[{SDBG}:{SDBG+3}], s{sT} sc1
        s_mov_b64 exec, -1
        """)

    vKL, vAW, vUW, vBR, vUE, vYW, vYR, vYG = 4, 5, 6, 7, 8, 9, 10, 11
    KT = 112
    A(f"""
    s_mul_i32 s{sT}, s{sW}, {4*KC_STRIDE}
    v_lshl_add_u32 v{vKL}, v1, 4, s{sT}
    s_waitcnt vmcnt({1+3+6+4})
    """)
    for it in range(5):
        w = KL + 6*it
        t = KT + 12*(it % 2)
        if it == 4: A("s_mov_b64 exec, 15")
        for k in range(4): A(f"v_alignbit_b32 v{t+k}, v{w+k+1}, v{w+k}, 16")
        A(f"ds_write_b128 v{vKL}, {v(t,4)} offset:{0*KC_STRIDE + 1024*it}")
        A(f"v_pk_mov_b32 {v(t+4,2)}, {v(w,2)}, {v(w+2,2)} op_sel:[1,0]")
        A(f"v_pk_mov_b32 {v(t+6,2)}, {v(w+2,2)}, {v(w+4,2)} op_sel:[1,0]")
        A(f"ds_write_b128 v{vKL}, {v(t+4,4)} offset:{1*KC_STRIDE + 1024*it}")
        for k in range(4): A(f"v_alignbit_b32 v{t+8+k}, v{w+k+2}, v{w+k+1}, 16")
        A(f"ds_write_b128 v{vKL}, {v(t+8,4)} offset:{2*KC_STRIDE + 1024*it}")
        A(f"ds_write_b128 v{vKL}, {v(w+2,4)} offset:{3*KC_STRIDE + 1024*it}")
    A("s_mov_b64 exec, -1")
    A(f"""
    v_and_b32 v2, 3, v1
    v_mul_u32_u24 v{vAW}, {KC_STRIDE}, v2
    v_lshrrev_b32 v3, 2, v1
    v_lshl_add_u32 v{vAW}, v3, 4, v{vAW}
    v_add_u32 v{vAW}, s{sT}, v{vAW}
    s_mul_i32 s{sT2}, s{sW}, {4*UQ}
    s_add_u32 s{sT2}, s{sT2}, {L_U}
    v_mul_u32_u24 v{vUW}, {UQ}, v2
    v_lshl_add_u32 v{vUW}, v3, 4, v{vUW}
    v_add_u32 v{vUW}, s{sT2}, v{vUW}
    v_and_b32 v2, 15, v1
    v_lshrrev_b32 v3, 4, v1
    v_sub_u32 v{vBR}, v2, v3
    v_lshl_add_u32 v{vBR}, v{vBR}, 4, s{sT2}
    v_add_u32 v{vBR}, 64, v{vBR}
    v_mul_u32_u24 v{vUE}, {UQ}, v3
    v_lshl_add_u32 v{vUE}, v2, 4, v{vUE}
    v_add_u32 v{vUE}, s{sT2}, v{vUE}
    v_mov_b32 v{KT}, 0
    v_mov_b32 v{KT+1}, 0
    v_mov_b32 v{KT+2}, 0
    v_mov_b32 v{KT+3}, 0
    ds_write_b128 v{vUE}, {v(KT,4)}
    v_mul_u32_u24 v{vYW}, 272, v2
    v_lshl_add_u32 v{vYW}, v3, 6, v{vYW}
    s_lshl_b32 s{sT}, s{sW}, 4
    s_add_u32 s{sT}, s{sT}, {L_Y}
    v_add_u32 v{vYW}, s{sT}, v{vYW}
    v_lshrrev_b32 v2, 4, v0
    v_mul_u32_u24 v{vYR}, 272, v2
    v_and_b32 v3, 15, v0
    v_lshl_add_u32 v{vYR}, v3, 4, v{vYR}
    v_add_u32 v{vYR}, {L_Y}, v{vYR}
    v_lshrrev_b32 v2, 3, v0
    v_mul_u32_u24 v{vYG}, 20480, v2
    v_and_b32 v3, 7, v0
    v_lshl_add_u32 v{vYG}, v3, 4, v{vYG}
    s_mul_i32 s{sYO}, s{sG}, 20
    s_add_u32 s{sYO}, s{sYO}, s{sM}
    s_lshl_b32 s{sYO}, s{sYO}, 7
    s_add_u32 s{sYO}, s{sYO}, {Y_OFF}
    s_waitcnt lgkmcnt(0)
    s_bitcmp1_b32 s{sCH}, 0
    s_cselect_b32 s{sT}, 16, 0
    s_lshr_b32 s{sDLO}, s{sDLO}, s{sT}
    s_and_b32 s{sDLO}, s{sDLO}, 0xffff
    s_lshl_b32 s{sDHI}, s{sDLO}, 16
    """)
    stamp(4)
    b1_arrive()
    WV = 112
    def wreg(g, off, n):
        return a(18*g + off, n) if g < 14 else v(WV + 18*(g-14) + off, n)
    order = []
    for st in range(4): order += [15-st, 11-st, 7-st, 3-st]
    for g in order:
        for x in range(4):
            A(f"ds_read_b128 {wreg(g,4*x,4)}, v{vAW} offset:{256*g + 16*x}")
        A(f"ds_read_b64 {wreg(g,16,2)}, v{vAW} offset:{256*g + 64}")
    stamp(5)
    A(f"""
    s_lshl_b32 s{sT}, s{sG}, 2
    s_mov_b32 s{sCNT}, 0
    L_b0:
    buffer_load_dword v2, off, s[{SDBG}:{SDBG+3}], s{sT} sc1
    s_add_u32 s{sCNT}, s{sCNT}, 1
    s_cmp_gt_u32 s{sCNT}, {SPIN}
    s_cbranch_scc1 L_b0x
    s_waitcnt vmcnt(0)
    v_cmp_ne_u32 vcc, 32, v2
    s_cbranch_vccnz L_b0
    L_b0x:
    s_lshl_b32 s{sT}, s{sCH}, 12
    v_lshlrev_b32 v3, 4, v1
    s_mov_b32 s{sCNT}, 0
    """)
    stamp(6)
    UL = 148
    A("L_upoll:")
    for it in range(4):
        A(f"buffer_load_dwordx4 {v(UL+4*it,4)}, v3, s[{SWS}:{SWS+3}], s{sT} offen offset:{1024*it} sc1")
    A(f"""
    s_add_u32 s{sCNT}, s{sCNT}, 1
    s_cmp_gt_u32 s{sCNT}, {SPIN}
    s_cbranch_scc1 L_upollx
    s_waitcnt vmcnt(3)
    v_max3_u32 v2, v{UL}, v{UL+1}, v{UL+2}
    s_waitcnt vmcnt(2)
    v_max3_u32 v2, v2, v{UL+3}, v{UL+4}
    v_max3_u32 v2, v2, v{UL+5}, v{UL+6}
    s_waitcnt vmcnt(1)
    v_max3_u32 v2, v2, v{UL+7}, v{UL+8}
    v_max3_u32 v2, v2, v{UL+9}, v{UL+10}
    s_waitcnt vmcnt(0)
    v_max3_u32 v2, v2, v{UL+11}, v{UL+12}
    v_max3_u32 v2, v2, v{UL+13}, v{UL+14}
    v_max_u32 v2, v2, v{UL+15}
    v_cmp_eq_u32 vcc, -1, v2
    s_cbranch_vccnz L_upoll
    L_upollx:
    s_waitcnt vmcnt(0)
    """)
    stamp(7)
    for it in range(4):
        A(f"ds_write_b128 v{vUW}, {v(UL+4*it,4)} offset:{256 + 256*it}")
    A(f"v_and_b32 v3, 7, v1\nv_lshlrev_b32 v3, 2, v3\nbuffer_load_dword v12, v3, s[{SDBG}:{SDBG+3}], 0 offen offset:128 sc1")
    A("s_waitcnt lgkmcnt(0)")
    ACC, BB = 32, 64
    def breg(st, q): return BB + 16*(st % 3) + 4*q
    def bload(st):
        return [f"ds_read_b128 {v(breg(st,q),4)}, v{vBR} offset:{q*UQ + 64*st}" for q in range(4)]
    for st in (0, 1):
        for l in bload(st): A(l)
    lds_issued = [('B', 0)]*4 + [('B', 1)]*4
    def lds(tag, text):
        A(text); lds_issued.append(tag)
    def wait_for(tag):
        idx = max(i for i, t in enumerate(lds_issued) if t == tag)
        n = len(lds_issued) - 1 - idx
        A(f"s_waitcnt lgkmcnt({min(n,15)})")
    EU, EY = 148, 152
    def epi_ops(nt):
        ops = []
        eu = EU + 8*(nt % 2); ey = EY + 8*(nt % 2)
        ops.append(('lds', ('U', nt), f"ds_read_b128 {v(eu,4)}, v{vUE} offset:{256 + 256*nt}"))
        ops.append(('wait', ('U', nt), None))
        for x in range(8):
            j = 7 - x
            acc = ACC + 8*nt + x
            ops.append(('v', None, f"v_dot2c_f32_bf16 v{acc}, s{sDHI if (j & 1) else sDLO}, v{eu + (j >> 1)}"))
        for b in range(4):
            acc = ACC + 8*nt + 2*b
            ops.append(('v', None, f"v_cvt_pk_bf16_f32 v{ey+b}, v{acc}, v{acc+1}"))
        ops.append(('lds', ('W', nt), f"ds_write_b128 v{vYW}, {v(ey,4)} offset:{4352*nt}"))
        ops.append(('wait', ('W', nt), None))
        ops.append(('x', None, "s_barrier"))
        ops.append(('lds', ('R', nt), f"ds_read_b128 {v(eu,4)}, v{vYR} offset:{4352*nt}"))
        if nt == 0:
            ops.append(('b1', None, None))
        ops.append(('x', None, f"s_add_u32 s{sT}, s{sYO}, {32*20480*nt}"))
        ops.append(('wait', ('R', nt), None))
        ops.append(('x', None, f"buffer_store_dwordx4 {v(eu,4)}, v{vYG}, s[{SWS}:{SWS+3}], s{sT} offen sc1"))
        return ops
    def emit_op(o):
        kind, tag, text = o
        if kind == 'lds': lds(tag, text)
        elif kind == 'wait': wait_for(tag)
        elif kind == 'b1':
            A(f"""
            s_waitcnt vmcnt(0)
            v_cmp_ne_u32 vcc, 32, v12
            s_cbranch_vccz L_b1x
            s_mov_b32 s{sCNT}, 0
            L_b1:
            buffer_load_dword v12, v3, s[{SDBG}:{SDBG+3}], 0 offen offset:128 sc1
            s_add_u32 s{sCNT}, s{sCNT}, 1
            s_cmp_gt_u32 s{sCNT}, {SPIN}
            s_cbranch_scc1 L_b1x
            s_waitcnt vmcnt(0)
            v_cmp_ne_u32 vcc, 32, v12
            s_cbranch_vccnz L_b1
            L_b1x:
            """)
        else: A(text)
    pending = []
    started = set()
    for st in range(16):
        e = st - 3
        wait_for(('B', st))
        mf = []
        for q in range(4):
            for nt in range(3, -1, -1):
                g = 4*nt - e
                if g < 0 or g > 4*nt + 3: continue
                for mt in range(2):
                    acc = ACC + 8*nt + 4*mt
                    c = v(acc, 4) if (nt, mt) in started else "0"
                    started.add((nt, mt))
                    mf.append(f"v_mfma_f32_16x16x32_bf16 {v(acc,4)}, {wreg(g, 12-4*q+2*mt, 4)}, {v(breg(st,q),4)}, {c}")
        nb = bload(st + 2) if st + 2 < 16 else []
        for i, m in enumerate(mf):
            A(m)
            if i < len(nb) * 2 and i % 2 == 1:
                lds(('B', st + 2), nb[i // 2])
            elif pending and i >= 1:
                k = 0
                while pending and k < 2:
                    o = pending.pop(0); emit_op(o)
                    if o[0] in ('v', 'lds'): k += 1
                    if o[0] == 'wait' : k += 1
        if st % 4 == 3:
            while pending: emit_op(pending.pop(0))
            pending = [('x', None, "s_nop 0")] + epi_ops(st // 4)
    while pending: emit_op(pending.pop(0))
    stamp(8)
    A("s_branch L_p2")

    A("L_ffn_prep:")
    FL = 64
    A(f"""
    v_lshrrev_b32 v2, 1, v1
    v_and_b32 v3, 1, v1
    s_mul_i32 s{sT}, s{sW}, {160*3072}
    s_lshl_b32 s{sT2}, s{sJ}, 5
    s_add_u32 s{sT}, s{sT}, s{sT2}
    v_mul_u32_u24 v4, 3072, v2
    v_lshl_add_u32 v4, v3, 4, v4
    v_add_u32 v4, s{sT}, v4
    """)
    for i in range(5):
        A(f"global_load_dwordx4 {v(FL+4*i,4)}, v4, s[24:25]")
        A(f"global_load_dwordx4 {v(FL+20+4*i,4)}, v4, s[26:27]")
        if i < 4: A(f"v_add_u32 v4, {32*3072}, v4")
    sJD = sR0
    DL = 148
    A(f"""
    s_sub_u32 s{sT3}, s{sM}, 20
    s_mul_i32 s{sJD}, s{sG}, 5
    s_add_u32 s{sJD}, s{sJD}, s{sT3}
    s_cmp_lt_u32 s{sT3}, 5
    s_cbranch_scc0 L_nodown
    s_mul_i32 s{sT}, s{sW}, {384*1280}
    s_lshl_b32 s{sT2}, s{sJD}, 5
    s_add_u32 s{sT}, s{sT}, s{sT2}
    v_mul_u32_u24 v4, 1280, v2
    v_lshl_add_u32 v4, v3, 4, v4
    v_add_u32 v4, s{sT}, v4
    """)
    for i in range(12):
        A(f"global_load_dwordx4 {v(DL+4*i,4)}, v4, s[28:29]")
        if i < 11: A(f"v_add_u32 v4, {32*1280}, v4")
    A("L_nodown:")
    b1_arrive()
    A(f"""
    s_mul_i32 s{sT}, s{sW}, {4*KC_STRIDE}
    v_lshl_add_u32 v4, v1, 4, s{sT}
    v_lshrrev_b32 v2, 4, v1
    v_bfe_u32 v3, v1, 2, 2
    v_lshlrev_b32 v5, 8, v2
    v_lshl_add_u32 v5, v3, 5, v5
    v_and_b32 v3, 3, v1
    v_lshl_add_u32 v5, v3, 3, v5
    v_add_u32 v5, s{sT}, v5
    """)
    for i in range(10):
        A(f"ds_write_b128 v4, {v(FL+4*i,4)} offset:{1024*i}")
    A("s_waitcnt lgkmcnt(0)")
    AG, AU, AD = 0, 20, 40
    for i in range(10):
        A(f"ds_read_b64_tr_b16 {a(4*i,2)}, v5 offset:{1024*i}")
        A(f"ds_read_b64_tr_b16 {a(4*i+2,2)}, v5 offset:{1024*i+128}")
    A("s_waitcnt lgkmcnt(0)")
    for i in range(12):
        A(f"ds_write_b128 v4, {v(DL+4*i,4)} offset:{1024*i}")
    A("s_waitcnt lgkmcnt(0)")
    for i in range(12):
        A(f"ds_read_b64_tr_b16 {a(AD+4*i,2)}, v5 offset:{1024*i}")
        A(f"ds_read_b64_tr_b16 {a(AD+4*i+2,2)}, v5 offset:{1024*i+128}")
    A("s_waitcnt lgkmcnt(0)")
    stamp(8)

    A("L_p2:")
    XF, LF = 32, 52
    DF = 72
    def xraw(t, p): return (XR0, XR1)[t] + p if p < 4 else (XS0, XS1)[t]
    Z, Z1, ZE = 2, 3, 12
    def unpack(dst, src):
        A(f"v_lshlrev_b32 v{dst}, 16, v{src}\nv_and_b32 v{dst+1}, s{sMASK}, v{src}")
    def reduce2(a0, a1, fill=None):
        fill = list(fill or [])
        def F(n):
            for _ in range(n):
                if fill: A(fill.pop(0))
        A(f"v_add_f32 v{Z}, v{a0}, v{a0+1}\nv_add_f32 v{Z1}, v{a1}, v{a1+1}")
        F(2)
        A(f"v_permlane32_swap_b32 v{Z}, v{Z1}")
        A(f"v_add_f32 v{Z}, v{Z}, v{Z1}")
        for m in ("quad_perm:[1,0,3,2]", "quad_perm:[2,3,0,1]", "row_half_mirror", "row_mirror"):
            F(2)
            A(f"v_add_f32_dpp v{Z}, v{Z}, v{Z} {m} row_mask:0xf bank_mask:0xf")
        F(2)
        A(f"v_add_f32_dpp v{Z}, v{Z}, v{Z} row_bcast:15 row_mask:0xa bank_mask:0xf")
        return fill
    def rnd(r):
        A(f"v_cvt_pk_bf16_f32 v{r}, v{r}, v{r}\nv_lshlrev_b32 v{r}, 16, v{r}")
    def stats(src, dst, S0):
        for t in range(2):
            A(f"v_pk_add_f32 {v(S0+2*t,2)}, {v(src+10*t,2)}, {v(src+10*t+2,2)}")
        for p in range(2, 5):
            for t in range(2):
                A(f"v_pk_add_f32 {v(S0+2*t,2)}, {v(S0+2*t,2)}, {v(src+10*t+2*p,2)}")
        reduce2(S0, S0+2)
        A(f"""
        v_mul_f32 v{Z}, {1.0/640!r}, v{Z}
        v_cvt_pk_bf16_f32 v{Z1}, v{Z}, v{Z}
        v_lshlrev_b32 v{Z1}, 16, v{Z1}
        v_sub_f32 v{ZE}, v{Z}, v{Z1}
        v_readlane_b32 s{sP0}, v{Z1}, 16
        v_readlane_b32 s{sP1}, v{Z1}, 48
        """)
        for p in range(5):
            for t in range(2):
                sp = (sP0, sP1)[t]
                A(f"v_pk_add_f32 {v(dst+10*t+2*p,2)}, {v(src+10*t+2*p,2)}, s[{sp}:{sp+1}] op_sel_hi:[1,0] neg_lo:[0,1] neg_hi:[0,1]")
        for p in range(5):
            for t in range(2):
                d = v(dst+10*t+2*p, 2)
                if p == 0: A(f"v_pk_mul_f32 {v(S0+2*t,2)}, {d}, {d}")
                else: A(f"v_pk_fma_f32 {v(S0+2*t,2)}, {d}, {d}, {v(S0+2*t,2)}")
        fill = []
        if EXACT:
            for p in range(5):
                for t in range(2):
                    d = dst+10*t+2*p
                    fill += [f"v_cvt_pk_bf16_f32 v{d}, v{d}, v{d+1}", f"v_and_b32 v{d+1}, s{sMASK}, v{d}", f"v_lshlrev_b32 v{d}, 16, v{d}"]
        fill = reduce2(S0, S0+2, fill)
        A(f"""
        v_mul_f32 v{Z}, {1.0/640!r}, v{Z}
        v_fma_f32 v{Z}, -v{ZE}, v{ZE}, v{Z}
        """)
        rnd(Z)
        A(f"v_add_f32 v{Z}, {1e-5!r}, v{Z}")
        rnd(Z)
        A(f"v_sqrt_f32 v{Z}, v{Z}")
        for _ in range(min(2, len(fill))): A(fill.pop(0))
        rnd(Z)
        A(f"v_rcp_f32 v{Z}, v{Z}")
        for f in fill: A(f)
        A(f"v_readlane_b32 s{sP0}, v{Z}, 16\nv_readlane_b32 s{sP1}, v{Z}, 48")
        for p in range(5):
            for t in range(2):
                sp = (sP0, sP1)[t]
                A(f"v_pk_mul_f32 {v(dst+10*t+2*p,2)}, {v(dst+10*t+2*p,2)}, s[{sp}:{sp+1}] op_sel_hi:[1,0]")
    A("s_waitcnt vmcnt(4)")
    for t in range(2):
        for p in range(5): unpack(XF+10*t+2*p, xraw(t, p))
    stats(XF, LF, 92)
    for t in range(2):
        for p in range(5):
            d = LF+10*t+2*p
            A(f"v_cvt_pk_bf16_f32 v{d}, v{d}, v{d+1}\nv_and_b32 v{d+1}, s{sMASK}, v{d}\nv_lshlrev_b32 v{d}, 16, v{d}")
    vYA, vPW, vPR, vPS = 4, 5, 6, 7
    YL = 96
    A(f"""
    v_lshrrev_b32 v{vYA}, 2, v0
    v_and_b32 v3, 3, v0
    v_lshlrev_b32 v{vYA}, 7, v{vYA}
    v_lshl_add_u32 v{vYA}, v3, 4, v{vYA}
    s_mul_i32 s{sYO}, s{sTB16}, 20480
    s_and_b32 s{sT}, s{sTAU}, 1
    s_lshl_b32 s{sT}, s{sT}, 6
    s_add_u32 s{sYO}, s{sYO}, s{sT}
    s_add_u32 s{sYO}, s{sYO}, {Y_OFF}
    s_add_u32 s{sT2}, s{sYO}, 8192
    s_add_u32 s{sT3}, s{sYO}, 16384
    s_cmp_lt_u32 s{sW}, 2
    s_cselect_b32 s{sT3}, s{sT3}, {WS_SIZE}
    v_lshlrev_b32 v{vPW}, 2, v0
    v_add_u32 v{vPW}, {L_P2}, v{vPW}
    s_mul_i32 s{sT}, s{sW}, 2560
    s_add_u32 s{sT}, s{sT}, {L_P2}
    v_lshl_add_u32 v{vPR}, v1, 5, s{sT}
    s_add_u32 s{sT}, s{sT}, 2048
    v_lshl_add_u32 v{vPS}, v1, 3, s{sT}
    s_mov_b32 s{sCNT}, 0
    """)
    stamp(9)
    A(f"""
    s_cmp_lt_u32 s{sM}, 20
    s_cbranch_scc1 L_ypoll
    L_yprobe:
    s_mov_b64 exec, 1
    buffer_load_dword v{YL}, v{vYA}, s[{SWS}:{SWS+3}], s{sYO} offen sc1
    s_add_u32 s{sCNT}, s{sCNT}, 1
    s_cmp_gt_u32 s{sCNT}, {SPIN}
    s_waitcnt vmcnt(0)
    v_cmp_eq_u32 vcc, -1, v{YL}
    s_mov_b64 exec, -1
    s_cbranch_scc1 L_ypoll
    s_cbranch_vccz L_ypoll
    s_sleep 6
    s_branch L_yprobe
    L_ypoll:
    buffer_load_dwordx4 {v(YL,4)}, v{vYA}, s[{SWS}:{SWS+3}], s{sYO} offen sc1
    buffer_load_dwordx4 {v(YL+4,4)}, v{vYA}, s[{SWS}:{SWS+3}], s{sT2} offen sc1
    buffer_load_dwordx4 {v(YL+8,4)}, v{vYA}, s[{SWS}:{SWS+3}], s{sT3} offen sc1
    s_add_u32 s{sCNT}, s{sCNT}, 1
    s_cmp_gt_u32 s{sCNT}, {SPIN}
    s_cbranch_scc1 L_ypollx
    s_waitcnt vmcnt(2)
    v_max3_u32 v2, v{YL}, v{YL+1}, v{YL+2}
    s_waitcnt vmcnt(1)
    v_max3_u32 v2, v2, v{YL+3}, v{YL+4}
    v_max3_u32 v2, v2, v{YL+5}, v{YL+6}
    s_waitcnt vmcnt(0)
    v_max3_u32 v2, v2, v{YL+7}, v{YL+8}
    v_max3_u32 v2, v2, v{YL+9}, v{YL+10}
    v_max_u32 v2, v2, v{YL+11}
    v_cmp_eq_u32 vcc, -1, v2
    s_cbranch_vccnz L_ypoll
    L_ypollx:
    s_waitcnt vmcnt(0)
    """)
    stamp(10)
    for it in range(2):
        A(f"ds_write2st64_b32 v{vPW}, v{YL+4*it}, v{YL+4*it+1} offset0:{4*it} offset1:{10+4*it}")
        A(f"ds_write2st64_b32 v{vPW}, v{YL+4*it+2}, v{YL+4*it+3} offset0:{20+4*it} offset1:{30+4*it}")
    A(f"""
    s_cmp_lt_u32 s{sW}, 2
    s_cbranch_scc0 L_pw2
    ds_write2st64_b32 v{vPW}, v{YL+8}, v{YL+9} offset0:8 offset1:18
    ds_write2st64_b32 v{vPW}, v{YL+10}, v{YL+11} offset0:28 offset1:38
    L_pw2:
    s_waitcnt lgkmcnt(0)
    s_barrier
    """)
    Q, YF, HF, HP, LP = 96, 108, 128, 148, 160
    A(f"""
    ds_read_b128 {v(Q,4)}, v{vPR}
    ds_read_b128 {v(Q+4,4)}, v{vPR} offset:16
    ds_read_b64 {v(Q+8,2)}, v{vPS}
    """)
    for i in range(10):
        if i == 0: A("s_waitcnt lgkmcnt(2)")
        if i == 4: A("s_waitcnt lgkmcnt(1)")
        if i == 8: A("s_waitcnt lgkmcnt(0)")
        A(f"v_lshlrev_b32 v{YF+i}, 16, v{Q+i}\nv_and_b32 v{YF+10+i}, s{sMASK}, v{Q+i}")
    def hp(t, p): return HP + 6*t + p
    def lp(t, p): return LP + 6*t + p
    for p in range(5):
        for t in range(2):
            o = 10*t + 2*p
            if EXACT:
                A(f"v_pk_mul_f32 {v(YF+o,2)}, {v(LF+o,2)}, {v(YF+o,2)}")
                A(f"v_cvt_pk_bf16_f32 v{YF+o}, v{YF+o}, v{YF+o+1}\nv_and_b32 v{YF+o+1}, s{sMASK}, v{YF+o}\nv_lshlrev_b32 v{YF+o}, 16, v{YF+o}")
                A(f"v_pk_add_f32 {v(YF+o,2)}, {v(XF+o,2)}, {v(YF+o,2)}")
            else:
                A(f"v_pk_fma_f32 {v(YF+o,2)}, {v(LF+o,2)}, {v(YF+o,2)}, {v(XF+o,2)}")
            A(f"v_cvt_pk_bf16_f32 v{hp(t,p)}, v{YF+o}, v{YF+o+1}")
            unpack(HF+o, hp(t, p))
    stats(HF, DF, 92)
    RA = 92
    def wr(p): return WR4 + p if p < 4 else WR1
    for p in range(5):
        for t in range(2):
            o = 10*t + 2*p
            A(f"v_cvt_pk_bf16_f32 v{lp(t,p)}, v{DF+o}, v{DF+o+1}")
    A(f"v_mov_b32 v{RA+1}, 0\nv_mov_b32 v{RA+3}, 0")
    for p in range(5):
        for t in range(2):
            if p == 0: A(f"v_dot2_f32_bf16 v{RA+2*t}, v{lp(t,p)}, v{wr(p)}, 0")
            else: A(f"v_dot2_f32_bf16 v{RA+2*t}, v{lp(t,p)}, v{wr(p)}, v{RA+2*t}")
    vKI, vKA = 8, 9
    fill = [f"v_lshrrev_b32 v{vKI}, 5, v1",
            f"s_lshl_b32 s{sT}, s{sTAU}, 3",
            f"s_lshl_b32 s{sT2}, s{sW}, 1",
            f"s_add_u32 s{sT}, s{sT}, s{sT2}",
            f"s_sub_u32 s{sT}, 2047, s{sT}",
            f"s_lshl_b32 s{sT2}, s{sW}, 3",
            f"s_add_u32 s{sT2}, s{sT2}, {L_S}",
            f"v_lshl_add_u32 v{vKA}, v{vKI}, 2, s{sT2}",
            f"v_sub_u32 v{vKI}, s{sT}, v{vKI}",
            f"v_mov_b32 v10, {L_S}"]
    fill = reduce2(RA, RA+2, fill)
    for f in fill: A(f)
    KK = 172
    A(f"""
    v_cvt_pk_bf16_f32 v{Z}, v{Z}, v{Z}
    v_ashrrev_i32 v{Z1}, 31, v{Z}
    v_or_b32 v{Z1}, 0x80000000, v{Z1}
    v_xor_b32 v{Z}, v{Z}, v{Z1}
    v_and_or_b32 v{Z}, v{Z}, s{sMASK}, v{vKI}
    s_mov_b32 exec_lo, 0x10000
    s_mov_b32 exec_hi, 0x10000
    ds_write_b32 v{vKA}, v{Z}
    s_mov_b64 exec, -1
    s_waitcnt lgkmcnt(0)
    s_barrier
    ds_read_b128 {v(KK,4)}, v10
    ds_read_b128 {v(KK+4,4)}, v10 offset:16
    s_lshl_b32 s{sT}, s{sTAU}, 7
    s_add_u32 s{sT}, s{sT}, {G_OFF}
    s_cmp_eq_u32 s{sW}, 0
    s_cselect_b32 s{sT}, s{sT}, {WS_SIZE}
    s_waitcnt lgkmcnt(1)
    v_max_u32 v{KK+8}, v{KK}, v{KK+1}
    v_min_u32 v{KK+9}, v{KK}, v{KK+1}
    """)
    for i in range(2, 8):
        if i == 4: A("s_waitcnt lgkmcnt(0)")
        A(f"v_med3_u32 v{KK+9}, v{KK+8}, v{KK+9}, v{KK+i}\nv_max_u32 v{KK+8}, v{KK+8}, v{KK+i}")
    A(f"""
    s_mov_b64 exec, 1
    buffer_store_dwordx2 {v(KK+8,2)}, off, s[{SWS}:{SWS+3}], s{sT} sc1
    s_mov_b64 exec, -1
    v_readfirstlane_b32 s{sK1}, v{KK+8}
    v_readfirstlane_b32 s{sK2}, v{KK+9}
    """)
    stamp(11)
    vRA, vRB = 4, 5
    A(f"v_lshlrev_b32 v{vRA}, 4, v1\nv_lshlrev_b32 v{vRB}, 2, v1\nv_add_u32 v{vRB}, 1024, v{vRB}")
    def publish(src, off, tagname):
        SEL = 184
        for slot, sk in enumerate((sK1, sK2)):
            A(f"""
            s_not_b32 s{sT}, s{sk}
            s_bfe_u32 s{sT2}, s{sT}, 0x20001
            s_cmp_eq_u32 s{sT2}, s{sW}
            s_cbranch_scc0 L_{tagname}{slot}
            s_bitcmp1_b32 s{sT}, 0
            s_cselect_b64 s[{sE0}:{sE0+1}], -1, 0
            s_mul_i32 s{sT3}, s{sTAU}, 2560
            s_add_u32 s{sT3}, s{sT3}, {off + 1280*slot}
            """)
            for p in range(5):
                A(f"v_cndmask_b32 v{SEL+6*slot+p}, v{src+p}, v{src+6+p}, s[{sE0}:{sE0+1}]")
            A(f"""
            buffer_store_dwordx4 {v(SEL+6*slot,4)}, v{vRA}, s[{SWS}:{SWS+3}], s{sT3} offen sc1
            buffer_store_dword v{SEL+6*slot+4}, v{vRB}, s[{SWS}:{SWS+3}], s{sT3} offen sc1
            L_{tagname}{slot}:
            """)
    publish(LP, R_OFF, 'pl')
    OP = 196
    for p in range(5):
        for t in range(2):
            o = 10*t + 2*p
            unpack(DF+o, lp(t, p))
            A(f"v_pk_add_f32 {v(DF+o,2)}, {v(DF+o,2)}, {v(HF+o,2)}")
            A(f"v_cvt_pk_bf16_f32 v{OP+6*t+p}, v{DF+o}, v{DF+o+1}")
    A(f"""
    buffer_store_dwordx4 {v(OP,4)}, v{vXA}, s[{SOUT}:{SOUT+3}], 0 offen sc1
    buffer_store_dword v{OP+4}, v{vXB}, s[{SOUT}:{SOUT+3}], 0 offen sc1
    buffer_store_dwordx4 {v(OP+6,4)}, v{vXA}, s[{SOUT}:{SOUT+3}], 0 offen offset:1280 sc1
    buffer_store_dword v{OP+10}, v{vXB}, s[{SOUT}:{SOUT+3}], 0 offen offset:1280 sc1
    """)
    publish(HP, H_OFF, 'ph')
    A(f"""
    s_waitcnt vmcnt(0)
    s_barrier
    s_lshl_b32 s{sT}, s{sTAU}, 7
    s_add_u32 s{sT}, s{sT}, {D_OFF}
    s_cmp_eq_u32 s{sW}, 0
    s_cselect_b32 s{sT}, s{sT}, {WS_SIZE}
    v_mov_b32 v2, 1
    s_mov_b64 exec, 1
    buffer_store_dword v2, off, s[{SWS}:{SWS+3}], s{sT} sc1
    s_mov_b64 exec, -1
    """)
    stamp(12)
    A(f"s_cmp_lt_u32 s{sM}, 20\ns_cbranch_scc1 L_fin")

    K1, K2, T1, T2 = 32, 33, 34, 35
    A(f"""
    v_lshlrev_b32 v4, 7, v0
    s_mov_b32 s{sT}, {G_OFF}
    s_mov_b32 s{sCNT}, 0
    L_gpoll:
    buffer_load_dwordx2 {v(K1,2)}, v4, s[{SWS}:{SWS+3}], s{sT} offen sc1
    s_add_u32 s{sCNT}, s{sCNT}, 1
    s_cmp_gt_u32 s{sCNT}, {SPIN}
    s_cbranch_scc1 L_gpollx
    s_waitcnt vmcnt(0)
    v_max_u32 v2, v{K1}, v{K2}
    v_cmp_eq_u32 vcc, -1, v2
    s_and_b64 exec, exec, vcc
    s_cbranch_execnz L_gpoll
    L_gpollx:
    s_mov_b64 exec, -1
    s_waitcnt vmcnt(0)
    """)
    stamp(13)
    def merge_rows():
        for m in ("quad_perm:[1,0,3,2]", "quad_perm:[2,3,0,1]", "row_half_mirror", "row_mirror"):
            A(f"""
            v_min_u32_dpp v{T1}, v{K1}, v{K1} {m} row_mask:0xf bank_mask:0xf
            v_max_u32_dpp v{T2}, v{K2}, v{K2} {m} row_mask:0xf bank_mask:0xf
            v_max_u32_dpp v{K1}, v{K1}, v{K1} {m} row_mask:0xf bank_mask:0xf
            v_max_u32 v{K2}, v{T1}, v{T2}
            """)
    merge_rows()
    A(f"""
    v_lshrrev_b32 v5, 4, v0
    v_lshlrev_b32 v5, 3, v5
    v_add_u32 v5, {L_S+64}, v5
    v_and_b32 v6, 15, v1
    v_lshlrev_b32 v6, 3, v6
    v_add_u32 v6, {L_S+64}, v6
    ds_write_b64 v5, {v(K1,2)}
    s_waitcnt lgkmcnt(0)
    s_barrier
    ds_read_b64 {v(K1,2)}, v6
    s_waitcnt lgkmcnt(0)
    """)
    merge_rows()
    sTA, sTB, sRA, sRB = sP0, sP0+1, sP1, sP1+1
    A(f"""
    v_readfirstlane_b32 s{sK1}, v{K1}
    v_readfirstlane_b32 s{sK2}, v{K2}
    s_not_b32 s{sTA}, s{sK1}
    s_and_b32 s{sTA}, s{sTA}, 0x7ff
    s_not_b32 s{sTB}, s{sK2}
    s_and_b32 s{sTB}, s{sTB}, 0x7ff
    s_lshr_b32 s{sT}, s{sTA}, 3
    s_lshr_b32 s{sT2}, s{sTB}, 3
    s_mul_i32 s{sRA}, s{sT}, 2560
    s_mul_i32 s{sRB}, s{sT2}, 2560
    s_cmp_eq_u32 s{sT}, s{sT2}
    s_cselect_b32 s{sT3}, 1280, 0
    s_add_u32 s{sRB}, s{sRB}, s{sT3}
    v_and_b32 v2, 1, v1
    v_cmp_eq_u32 vcc, 1, v2
    v_mov_b32 v7, s{sRA}
    v_mov_b32 v8, s{sRB}
    v_cndmask_b32 v7, v7, v8, vcc
    v_lshrrev_b32 v3, 4, v1
    v_lshl_add_u32 v7, v3, 4, v7
    s_mul_i32 s{sT3}, s{sW}, 320
    s_add_u32 s{sT3}, s{sT3}, {R_OFF}
    s_mov_b32 s{sCNT}, 0
    L_xpoll:
    """)
    XS = 40
    for i in range(5):
        A(f"buffer_load_dwordx4 {v(XS+4*i,4)}, v7, s[{SWS}:{SWS+3}], s{sT3} offen offset:{64*i} sc1")
    A(f"""
    s_add_u32 s{sCNT}, s{sCNT}, 1
    s_cmp_gt_u32 s{sCNT}, {SPIN}
    s_cbranch_scc1 L_xpollx
    s_waitcnt vmcnt(0)
    v_max3_u32 v2, v{XS}, v{XS+1}, v{XS+2}
    """)
    for i in range(3, 19, 2): A(f"v_max3_u32 v2, v2, v{XS+i}, v{XS+i+1}")
    A(f"""
    v_max_u32 v2, v2, v{XS+19}
    v_cmp_eq_u32 vcc, -1, v2
    s_cbranch_vccnz L_xpoll
    L_xpollx:
    s_waitcnt vmcnt(0)
    """)
    stamp(14)
    DG, DU = 64, 68
    for i in range(5):
        A(f"v_mfma_f32_16x16x32_bf16 {v(DG,4)}, {a(AG+4*i,4)}, {v(XS+4*i,4)}, {v(DG,4) if i else 0}")
        A(f"v_mfma_f32_16x16x32_bf16 {v(DU,4)}, {a(AU+4*i,4)}, {v(XS+4*i,4)}, {v(DU,4) if i else 0}")
    L_F = L_S + 256
    A(f"""
    v_and_b32 v2, 15, v1
    v_lshlrev_b32 v5, 6, v2
    v_lshl_add_u32 v5, v3, 4, v5
    s_lshl_b32 s{sT}, s{sW}, 8
    s_add_u32 s{sT}, s{sT}, {L_F}
    v_add_u32 v5, s{sT}, v5
    v_lshlrev_b32 v6, 2, v1
    v_add_u32 v6, {L_F}, v6
    s_mov_b32 exec_lo, 0x00030003
    s_mov_b32 exec_hi, 0x00030003
    ds_write_b128 v5, {v(DG,4)}
    ds_write_b128 v5, {v(DU,4)} offset:128
    s_mov_b64 exec, -1
    s_waitcnt lgkmcnt(0)
    s_barrier
    s_cmp_eq_u32 s{sW}, 0
    s_cbranch_scc0 L_act_done
    """)
    PG = 72
    for w in range(4):
        A(f"ds_read2_b32 {v(PG+2*w,2)}, v6 offset0:{64*w} offset1:{64*w+32}")
    A(f"""
    s_lshl_b32 s{sT}, s{sJ}, 7
    s_add_u32 s{sT}, s{sT}, {A_OFF}
    v_lshlrev_b32 v6, 1, v1
    s_waitcnt lgkmcnt(2)
    v_pk_add_f32 {v(PG,2)}, {v(PG,2)}, {v(PG+2,2)}
    s_waitcnt lgkmcnt(0)
    v_pk_add_f32 {v(PG+4,2)}, {v(PG+4,2)}, {v(PG+6,2)}
    v_pk_add_f32 {v(PG,2)}, {v(PG,2)}, {v(PG+4,2)}
    v_cvt_pk_bf16_f32 v{PG}, v{PG}, v{PG+1}
    v_and_b32 v{PG+1}, s{sMASK}, v{PG}
    v_lshlrev_b32 v{PG}, 16, v{PG}
    v_mul_f32 v{PG+2}, {-1.4426950408889634!r}, v{PG}
    v_exp_f32 v{PG+2}, v{PG+2}
    v_add_f32 v{PG+2}, 1.0, v{PG+2}
    v_rcp_f32 v{PG+2}, v{PG+2}
    v_mul_f32 v{PG}, v{PG}, v{PG+2}
    v_cvt_pk_bf16_f32 v{PG}, v{PG}, v{PG}
    v_lshlrev_b32 v{PG}, 16, v{PG}
    v_mul_f32 v{PG}, v{PG}, v{PG+1}
    v_mov_b32_dpp v{PG+1}, v{PG} quad_perm:[1,0,3,2] row_mask:0xf bank_mask:0xf
    v_cvt_pk_bf16_f32 v{PG}, v{PG}, v{PG+1}
    s_mov_b32 exec_lo, 0x55555555
    s_mov_b32 exec_hi, 0
    buffer_store_dword v{PG}, v6, s[{SWS}:{SWS+3}], s{sT} offen sc1
    s_mov_b64 exec, -1
    L_act_done:
    """)
    stamp(15)
    A(f"""
    s_cmp_lt_u32 s{sM}, 25
    s_cbranch_scc0 L_fin
    """)
    vTK, vLN, vHH, vSG, vOA = 80, 81, 82, 83, 84
    A(f"""
    s_cmp_eq_u32 s{sW}, 0
    s_cbranch_scc0 L_nofin
    v_bfe_u32 v2, v1, 4, 1
    v_cmp_eq_u32 vcc, 1, v2
    v_mov_b32 v5, s{sTA}
    v_mov_b32 v6, s{sTB}
    v_cndmask_b32 v{vTK}, v5, v6, vcc
    v_mov_b32 v5, s{sRA}
    v_mov_b32 v6, s{sRB}
    v_cndmask_b32 v8, v5, v6, vcc
    v_mov_b32 v5, s{sK1}
    v_mov_b32 v6, s{sK2}
    v_cndmask_b32 v{vSG}, v5, v6, vcc
    v_lshrrev_b32 v9, 3, v{vTK}
    v_lshlrev_b32 v9, 7, v9
    s_mov_b32 s{sT}, {D_OFF}
    s_mov_b32 s{sCNT}, 0
    L_dpoll:
    buffer_load_dword v10, v9, s[{SWS}:{SWS+3}], s{sT} offen sc1
    s_add_u32 s{sCNT}, s{sCNT}, 1
    s_cmp_gt_u32 s{sCNT}, {SPIN}
    s_cbranch_scc1 L_dpollx
    s_waitcnt vmcnt(0)
    v_cmp_ne_u32 vcc, 1, v10
    s_cbranch_vccnz L_dpoll
    L_dpollx:
    v_and_b32 v2, 15, v1
    s_lshl_b32 s{sT}, s{sJD}, 5
    v_lshl_add_u32 v2, v2, 1, s{sT}
    v_add_u32 v8, v8, v2
    s_mov_b32 s{sT}, {R_OFF}
    s_mov_b32 s{sT2}, {H_OFF}
    buffer_load_ushort v{vLN}, v8, s[{SWS}:{SWS+3}], s{sT} offen sc1
    buffer_load_ushort v{vHH}, v8, s[{SWS}:{SWS+3}], s{sT2} offen sc1
    v_mul_u32_u24 v{vOA}, 1280, v{vTK}
    v_add_u32 v{vOA}, v{vOA}, v2
    v_not_b32 v5, v{vSG}
    v_ashrrev_i32 v5, 31, v5
    v_or_b32 v5, 0x80000000, v5
    v_xor_b32 v{vSG}, v{vSG}, v5
    v_and_b32 v{vSG}, s{sMASK}, v{vSG}
    v_mul_f32 v{vSG}, {-1.4426950408889634!r}, v{vSG}
    v_exp_f32 v{vSG}, v{vSG}
    v_add_f32 v{vSG}, 1.0, v{vSG}
    v_rcp_f32 v{vSG}, v{vSG}
    v_cvt_pk_bf16_f32 v{vSG}, v{vSG}, v{vSG}
    v_lshlrev_b32 v{vSG}, 16, v{vSG}
    L_nofin:
    v_and_b32 v2, 1, v1
    v_lshlrev_b32 v7, 5, v2
    v_bfe_u32 v2, v1, 4, 1
    v_lshl_add_u32 v7, v2, 4, v7
    v_lshrrev_b32 v2, 5, v1
    v_lshl_add_u32 v7, v2, 7, v7
    s_mul_i32 s{sT3}, s{sW}, {24*128}
    s_add_u32 s{sT3}, s{sT3}, {A_OFF}
    s_mov_b32 s{sCNT}, 0
    L_apoll:
    """)
    AS = 96
    for i in range(12):
        A(f"buffer_load_dwordx4 {v(AS+4*i,4)}, v7, s[{SWS}:{SWS+3}], s{sT3} offen offset:{256*i} sc1")
    A(f"""
    s_add_u32 s{sCNT}, s{sCNT}, 1
    s_cmp_gt_u32 s{sCNT}, {SPIN}
    s_cbranch_scc1 L_apollx
    s_waitcnt vmcnt(0)
    v_max3_u32 v2, v{AS}, v{AS+1}, v{AS+2}
    """)
    for i in range(3, 47, 2): A(f"v_max3_u32 v2, v2, v{AS+i}, v{AS+i+1}")
    A(f"""
    v_max_u32 v2, v2, v{AS+47}
    v_cmp_eq_u32 vcc, -1, v2
    s_cbranch_vccnz L_apoll
    L_apollx:
    s_waitcnt vmcnt(0)
    """)
    stamp(16)
    for i in range(12):
        d = DG + 4*(i % 2)
        A(f"v_mfma_f32_16x16x32_bf16 {v(d,4)}, {a(AD+4*i,4)}, {v(AS+4*i,4)}, {v(d,4) if i > 1 else 0}")
    L_D = L_S + 1280
    A(f"""
    v_and_b32 v2, 15, v1
    v_lshrrev_b32 v3, 4, v1
    v_lshlrev_b32 v5, 6, v2
    v_lshl_add_u32 v5, v3, 4, v5
    s_lshl_b32 s{sT}, s{sW}, 7
    s_add_u32 s{sT}, s{sT}, {L_D}
    v_add_u32 v5, s{sT}, v5
    v_lshlrev_b32 v6, 2, v1
    v_add_u32 v6, {L_D}, v6
    v_pk_add_f32 {v(DG,2)}, {v(DG,2)}, {v(DU,2)}
    v_pk_add_f32 {v(DG+2,2)}, {v(DG+2,2)}, {v(DU+2,2)}
    s_mov_b32 exec_lo, 0x00030003
    s_mov_b32 exec_hi, 0x00030003
    ds_write_b128 v5, {v(DG,4)}
    s_mov_b64 exec, -1
    s_waitcnt lgkmcnt(0)
    s_barrier
    s_cmp_eq_u32 s{sW}, 0
    s_cbranch_scc0 L_fin
    ds_read2_b32 {v(PG,2)}, v6 offset0:0 offset1:32
    ds_read2_b32 {v(PG+2,2)}, v6 offset0:64 offset1:96
    v_lshlrev_b32 v{vLN}, 16, v{vLN}
    v_lshlrev_b32 v{vHH}, 16, v{vHH}
    s_waitcnt lgkmcnt(0)
    v_pk_add_f32 {v(PG,2)}, {v(PG,2)}, {v(PG+2,2)}
    v_add_f32 v{PG}, v{PG}, v{PG+1}
    """)
    rnd(PG)
    A(f"v_mul_f32 v{PG}, v{PG}, v{vSG}")
    rnd(PG)
    A(f"v_add_f32 v{PG}, v{PG}, v{vLN}")
    rnd(PG)
    A(f"""
    v_add_f32 v{PG}, v{PG}, v{vHH}
    v_mov_b32_dpp v{PG+1}, v{PG} quad_perm:[1,0,3,2] row_mask:0xf bank_mask:0xf
    v_cvt_pk_bf16_f32 v{PG}, v{PG}, v{PG+1}
    s_mov_b32 exec_lo, 0x55555555
    s_mov_b32 exec_hi, 0
    buffer_store_dword v{PG}, v{vOA}, s[{SOUT}:{SOUT+3}], 0 offen sc1
    s_mov_b64 exec, -1
    """)
    A("L_fin:")
    if STAMP:
        stamp(17)
        A(f"""
        s_lshl_b32 s{sT}, s2, 10
        s_lshl_b32 s{sT2}, s{sW}, 8
        s_add_u32 s{sT}, s{sT}, s{sT2}
        s_add_u32 s{sT}, s{sT}, {T_OFF}
        v_lshlrev_b32 v2, 2, v1
        buffer_store_dword v{VSTAMP}, v2, s[{SWS}:{SWS+3}], s{sT} offen
        """)
    A("L_end:\ns_endpgm")
    npad = A.pad()
    hdr = open(os.path.join(os.path.dirname(os.path.abspath(__file__)), 'header.txt')).read()
    out = hdr + f"; @launch grid=(256,1,1) block=(256,1,1) lds={LDS_SIZE}\n"
    out += f""".amdgcn_target "amdgcn-amd-amdhsa--gfx950"
.text
.globl {NAME}
.p2align 8
.type {NAME},@function
"""
    out += A.text()
    out += f""".section .rodata,"a"
.p2align 6
.amdhsa_kernel {NAME}
  .amdhsa_next_free_vgpr 512
  .amdhsa_next_free_sgpr 102
  .amdhsa_accum_offset 256
  .amdhsa_group_segment_fixed_size 0
  .amdhsa_kernarg_size 112
  .amdhsa_user_sgpr_count 2
  .amdhsa_user_sgpr_kernarg_segment_ptr 1
  .amdhsa_system_sgpr_workgroup_id_x 1
  .amdhsa_float_denorm_mode_32 3
.end_amdhsa_kernel
"""
    return out, npad

if __name__ == "__main__":
    opt = {}
    outp = None
    for arg in sys.argv[1:]:
        if '=' in arg:
            k, val = arg.split('='); opt[k] = int(val)
        else:
            outp = arg
    txt, npad = build(opt)
    open(outp or "sequential_preLN__ssm_conv_h3__moe_arch_mod__prompt.s", "w").write(txt)
    print("nops inserted:", npad, "lines:", txt.count("\n"))
```

```python
import sys, os
sys.path.insert(0, os.path.dirname(os.path.abspath(__file__)))
from asmlib import Asm

NAME = "sequential_preLN__ssm_conv_h3__moe_arch_mod__prompt_kernel"

U_OFF  = 0x000000
Y_OFF  = 0x280000
G_OFF  = 0x500000
R_OFF  = 0x510000
H_OFF  = 0x5B0000
A_OFF  = 0x650000
D_OFF  = 0x660000
T_OFF  = 0x700000
WS_SIZE = 0x800000

KC_STRIDE = 4160
L_K  = 0
L_U  = 66560
UQ   = 1312
L_P0 = L_U + 4*5248
L_Y  = L_P0 + 10240
L_P2 = L_Y + 4*4352
L_S  = L_P2 + 10240
LDS_SIZE = L_S + 2048

SPIN = 40000

def v(i, n=1): return f"v{i}" if n == 1 else f"v[{i}:{i+n-1}]"
def a(i, n=1): return f"a{i}" if n == 1 else f"a[{i}:{i+n-1}]"
def s(i, n=1): return f"s{i}" if n == 1 else f"s[{i}:{i+n-1}]"

def build(opt):
    A = Asm()
    STAMP = opt.get('stamp', 0)
    EXACT = opt.get('exact', 1)
    nst = [0]
    def stamp(tag):
        if STAMP:
            k = nst[0]; nst[0] += 1
            A(f"s_memrealtime s[{STAMPTMP}:{STAMPTMP+1}]\ns_waitcnt lgkmcnt(0)\nv_writelane_b32 v{VSTAMP}, s{STAMPTMP}, {tag}")
    STAMPTMP = 98
    VSTAMP = 15

    SK, SV, SWS, SKR, SOUT, SDBG, SX = 36, 40, 44, 48, 52, 56, 60
    sW, sG, sM, sMASK, sT = 3, 4, 5, 6, 7
    sTAU, sCH, sDLO, sDHI, sCNT, sT2, sT3, sT4 = 64, 65, 66, 67, 68, 69, 70, 71
    sUO, sYO, sJ, sTB16 = 72, 73, 74, 75
    sE0 = 76
    sP0 = 78
    sP1 = 80
    sK1, sK2 = 82, 83
    sR0 = 84
    sPC = 88

    def srd(base, ptr, nbytes):
        A(f"s_mov_b32 s{base}, s{ptr}\ns_mov_b32 s{base+1}, s{ptr+1}\ns_mov_b32 s{base+2}, {nbytes}\ns_mov_b32 s{base+3}, 0x00020000")

    A(f"{NAME}:")
    A(f"""
    s_cmp_ge_u32 s2, 256
    s_cbranch_scc1 L_end
    s_load_dwordx16 s[8:23], s[0:1], 0
    s_load_dwordx8 s[24:31], s[0:1], 64
    s_load_dwordx4 s[32:35], s[0:1], 96
    """)
    if STAMP:
        A(f"v_mov_b32 v{VSTAMP}, 0\ns_memrealtime s[{STAMPTMP}:{STAMPTMP+1}]")
    A(f"""
    s_getpc_b64 s[{sPC}:{sPC+1}]
    L_pc:
    s_mov_b32 s{sPC+2}, L_end-L_pc
    s_mov_b32 s{sPC+3}, 0x00020000
    s_and_b32 s{sG}, s2, 7
    s_lshr_b32 s{sM}, s2, 3
    s_and_b32 s{sT}, s{sM}, 3
    s_lshl_b32 s{sT}, s{sT}, 12
    v_lshlrev_b32 v2, 4, v0
    buffer_load_dword v3, v2, s[{sPC}:{sPC+3}], s{sT} offen
    v_and_b32 v1, 63, v0
    v_lshrrev_b32 v2, 6, v0
    s_mov_b32 s{sMASK}, 0xffff0000
    v_readfirstlane_b32 s{sW}, v2
    """)
    vCG, vRG = 2, 3
    vCG, vRG = 4, 5
    vA0, vA2, vA3, vB0, vB2, vB3 = 6, 7, 8, 9, 10, 11
    vSH0, vSH1 = 12, 13
    vUA = 14
    A(f"""
    v_and_b32 v{vCG}, 7, v0
    v_lshrrev_b32 v{vRG}, 3, v0
    s_mul_i32 s{sT}, s{sM}, {64*1280}
    s_mul_i32 s{sT2}, s{sG}, 160
    s_add_u32 s{sT}, s{sT}, s{sT2}
    v_mul_u32_u24 v{vA0}, 2560, v{vRG}
    v_add_u32 v{vA0}, s{sT}, v{vA0}
    v_lshl_add_u32 v{vB0}, v{vCG}, 2, v{vA0}
    v_add_u32 v{vB0}, 128, v{vB0}
    v_lshl_add_u32 v{vA0}, v{vCG}, 4, v{vA0}
    v_subrev_u32 v{vA2}, 2560, v{vA0}
    v_subrev_u32 v{vA3}, 3840, v{vA0}
    v_subrev_u32 v{vB2}, 2560, v{vB0}
    v_subrev_u32 v{vB3}, 3840, v{vB0}
    s_mul_i32 s{sT2}, s{sG}, 640
    v_lshl_add_u32 v{vSH0}, v{vCG}, 6, s{sT2}
    s_add_u32 s{sT2}, s{sT2}, 512
    v_lshl_add_u32 v{vSH1}, v{vCG}, 4, s{sT2}
    v_lshlrev_b32 v{vUA}, 12, v{vRG}
    v_lshl_add_u32 v{vUA}, v{vCG}, 4, v{vUA}
    s_mul_i32 s{sUO}, s{sG}, {80*4096}
    s_lshl_b32 s{sT}, s{sM}, 7
    s_add_u32 s{sUO}, s{sUO}, s{sT}
    s_waitcnt lgkmcnt(0)
    """)
    if STAMP: A(f"v_writelane_b32 v{VSTAMP}, s{STAMPTMP}, 0")
    srd(SK, 10, 2621440); srd(SV, 12, 2621440); srd(SWS, 34, WS_SIZE)
    KX4, KX1, VX4, VX1, SHR, SHC, ACC0 = 148, 168, 174, 182, 184, 204, 32
    PZ = 244
    A(f"v_mov_b32 v{PZ}, -1\nv_mov_b32 v{PZ+1}, -1\nv_mov_b32 v{PZ+2}, -1\nv_mov_b32 v{PZ+3}, -1")
    for i in range(4):
        A(f"global_load_dwordx4 {v(SHR+4*i,4)}, v{vSH0}, s[14:15] offset:{16*i}")
    A(f"global_load_dwordx4 {v(SHR+16,4)}, v{vSH1}, s[14:15]")
    def u_stores(regs, nm):
        A(f"buffer_store_dwordx4 {v(regs[0],4)}, v{vUA}, s[{SWS}:{SWS+3}], s{sUO} offen sc1")
        A(f"s_add_u32 s{sT}, s{sUO}, {32*4096}")
        A(f"buffer_store_dwordx4 {v(regs[1],4)}, v{vUA}, s[{SWS}:{SWS+3}], s{sT} offen sc1")
        A(f"s_add_u32 s{sT}, s{sUO}, {64*4096}")
        A(f"s_cmp_lt_u32 s{sW}, 2\ns_cselect_b32 s{sT}, s{sT}, {WS_SIZE}")
        A(f"buffer_store_dwordx4 {v(regs[2],4)}, v{vUA}, s[{SWS}:{SWS+3}], s{sT} offen sc1")
    u_stores([PZ, PZ, PZ], 'p')
    def kx4(r): return KX4 + 4*r
    def kx1(r): return KX1 + r
    A(f"""
    buffer_load_dwordx4 {v(VX4,4)}, v{vA0}, s[{SV}:{SV+3}], 0 offen
    buffer_load_dwordx4 {v(VX4+4,4)}, v{vA0}, s[{SV}:{SV+3}], 0 offen offset:1280
    buffer_load_dwordx4 {v(kx4(3),4)}, v{vA0}, s[{SK}:{SK+3}], 0 offen
    buffer_load_dwordx4 {v(kx4(4),4)}, v{vA0}, s[{SK}:{SK+3}], 0 offen offset:1280
    buffer_load_dword v{VX1}, v{vB0}, s[{SV}:{SV+3}], 0 offen
    buffer_load_dword v{VX1+1}, v{vB0}, s[{SV}:{SV+3}], 0 offen offset:1280
    buffer_load_dword v{kx1(3)}, v{vB0}, s[{SK}:{SK+3}], 0 offen
    buffer_load_dword v{kx1(4)}, v{vB0}, s[{SK}:{SK+3}], 0 offen offset:1280
    buffer_load_dwordx4 {v(kx4(0),4)}, v{vA3}, s[{SK}:{SK+3}], 0 offen
    buffer_load_dword v{kx1(0)}, v{vB3}, s[{SK}:{SK+3}], 0 offen
    buffer_load_dwordx4 {v(kx4(1),4)}, v{vA2}, s[{SK}:{SK+3}], 0 offen
    buffer_load_dwordx4 {v(kx4(2),4)}, v{vA2}, s[{SK}:{SK+3}], 0 offen offset:1280
    buffer_load_dword v{kx1(1)}, v{vB2}, s[{SK}:{SK+3}], 0 offen
    buffer_load_dword v{kx1(2)}, v{vB2}, s[{SK}:{SK+3}], 0 offen offset:1280
    """)
    KL = 76
    A(f"""
    s_mul_i32 s{sCH}, s{sG}, 80
    s_lshl_b32 s{sT}, s{sM}, 2
    s_add_u32 s{sCH}, s{sCH}, s{sT}
    s_add_u32 s{sCH}, s{sCH}, s{sW}
    s_cmp_lt_u32 s{sM}, 20
    s_cselect_b32 s{sCH}, s{sCH}, 0
    s_cselect_b32 s{SKR+2}, 4096, 0
    s_lshl_b32 s{sT}, s{sCH}, 12
    s_add_u32 s{SKR}, s16, s{sT}
    s_addc_u32 s{SKR+1}, s17, 0
    s_mov_b32 s{SKR+3}, 0x00020000
    s_lshr_b32 s{sT}, s{sCH}, 1
    s_lshl_b32 s{sT}, s{sT}, 2
    s_load_dword s{sDLO}, s[18:19], s{sT}
    v_lshlrev_b32 v{vA2}, 4, v1
    v_subrev_u32 v{vA3}, 64, v{vA2}
    v_subrev_u32 v{vB2}, 48, v{vA2}
    v_add_u32 v{vB3}, 960, v{vA2}
    buffer_load_dwordx4 {v(KL,4)}, v{vA3}, s[{SKR}:{SKR+3}], 0 offen
    buffer_load_dwordx2 {v(KL+4,2)}, v{vB2}, s[{SKR}:{SKR+3}], 0 offen
    """)
    for it in range(1, 5):
        A(f"buffer_load_dwordx4 {v(KL+6*it,4)}, v{vB3}, s[{SKR}:{SKR+3}], 0 offen offset:{1024*(it-1)}")
        A(f"buffer_load_dwordx2 {v(KL+6*it+4,2)}, v{vB3}, s[{SKR}:{SKR+3}], 0 offen offset:{1024*(it-1)+16}")
    XR0, XS0, XR1, XS1, WR4, WR1 = 16, 20, 22, 21, 28, 26
    vXA, vXB = 248, 249
    srd(SX, 8, 2621440); srd(SOUT, 30, 2621440); srd(SDBG, 32, 256)
    A(f"""
    s_add_u32 s{sT}, s{sM}, 12
    s_and_b32 s{sT}, s{sT}, 31
    s_lshr_b32 s{sTB16}, s{sT}, 1
    s_lshl_b32 s{sTB16}, s{sTB16}, 3
    s_add_u32 s{sTB16}, s{sTB16}, s{sG}
    s_and_b32 s{sT}, s{sT}, 1
    s_lshl_b32 s{sTAU}, s{sTB16}, 1
    s_add_u32 s{sTAU}, s{sTAU}, s{sT}
    s_lshl_b32 s{sT2}, s{sTAU}, 2
    s_add_u32 s{sT2}, s{sT2}, s{sW}
    s_mul_i32 s{sT2}, s{sT2}, 2560
    v_lshl_add_u32 v{vXA}, v1, 4, s{sT2}
    s_add_u32 s{sT2}, s{sT2}, 1024
    v_lshl_add_u32 v{vXB}, v1, 2, s{sT2}
    """)
    A(f"s_waitcnt vmcnt({3+14+10})")
    for c in range(10):
        for h in range(2):
            r = SHR + 2*c + h
            d = SHC + 4*c + 2*h
            if c % 2 == 0:
                A(f"v_and_b32 v{d}, 0xffff, v{r}\nv_lshrrev_b32 v{d+1}, 16, v{r}")
            else:
                A(f"v_lshlrev_b32 v{d}, 16, v{r}\nv_and_b32 v{d+1}, s{sMASK}, v{r}")
    vL0, vL1 = vA3, vB2
    A(f"""
    v_xor_b32 v{vA2}, 3, v{vRG}
    v_lshrrev_b32 v{vB3}, 2, v{vRG}
    v_xor_b32 v{vB3}, v{vB3}, v{vCG}
    v_and_b32 v{vA2}, 3, v{vA2}
    v_lshlrev_b32 v{vA2}, 2, v{vA2}
    v_lshl_add_u32 v{vA2}, v{vB3}, 4, v{vA2}
    v_add_u32 v{vA2}, {L_P0}, v{vA2}
    v_lshl_add_u32 v{vL0}, v{vCG}, 10, v{vA2}
    v_lshl_add_u32 v{vL1}, v{vCG}, 8, v{vA2}
    v_add_u32 v{vL1}, {64*128}, v{vL1}
    """)
    A(f"""
    s_waitcnt vmcnt({14+10})
    s_barrier
    s_lshl_b32 s{sT}, s{sG}, 2
    s_add_u32 s{sT}, s{sT}, 64
    s_cmp_eq_u32 s{sW}, 0
    s_cselect_b32 s{sT}, s{sT}, 256
    v_mov_b32 v2, 1
    s_mov_b64 exec, 1
    buffer_atomic_add v2, off, s[{SDBG}:{SDBG+3}], s{sT} sc1
    s_mov_b64 exec, -1
    """)
    stamp(1)
    A(f"s_waitcnt vmcnt({10+1})")
    stamp(2)
    def kreg(r, p): return kx4(r) + p if p < 4 else kx1(r)
    def vreg(t, p): return VX4 + 4*t + p if p < 4 else VX1 + t
    TMP = 52
    for p0 in ((0, 1), (2, 3), (4,)):
        accs = []
        for p in p0:
            for b in range(2):
                for t in range(2):
                    accs.append((p, b, t, ACC0 + 4*p + 2*b + t))
        for tap in range(4):
            for (p, b, t, acc) in accs:
                kr = kreg(3 + t - tap, p)
                w = SHC + 4*(2*p + b) + tap
                if tap == 0: A(f"v_dot2_f32_bf16 v{acc}, v{kr}, v{w}, 0")
                else: A(f"v_dot2c_f32_bf16 v{acc}, v{kr}, v{w}")
        for (p, b, t, acc) in accs:
            tr = TMP + (acc - ACC0) % 8
            if b == 0: A(f"v_lshlrev_b32 v{tr}, 16, v{vreg(t,p)}")
            else: A(f"v_and_b32 v{tr}, s{sMASK}, v{vreg(t,p)}")
        for (p, b, t, acc) in accs:
            tr = TMP + (acc - ACC0) % 8
            A(f"v_mul_f32 v{acc}, v{acc}, v{tr}")
        for p in p0:
            for b in range(2):
                acc = ACC0 + 4*p + 2*b
                A(f"v_cvt_pk_bf16_f32 v{acc}, v{acc+1}, v{acc}")
                if p < 4: A(f"ds_write_b32 v{vL0}, v{acc} offset:{(2*p+b)*128}")
                else: A(f"ds_write_b32 v{vL1}, v{acc} offset:{b*128}")
    RB = 64
    A(f"""
    v_and_b32 v{vA2}, 7, v0
    v_xor_b32 v{vB3}, s{sW}, v{vA2}
    v_lshlrev_b32 v{vA0}, 7, v{vRG}
    v_add_u32 v{vA0}, {L_P0}, v{vA0}
    v_lshl_add_u32 v{vB0}, v{vB3}, 4, v{vA0}
    v_xor_b32 v{vB3}, 4, v{vB3}
    v_lshl_add_u32 v{vB3}, v{vB3}, 4, v{vA0}
    v_bfe_u32 v{vSH0}, v0, 4, 3
    v_xor_b32 v{vA2}, v{vSH0}, v{vA2}
    v_lshl_add_u32 v{vA2}, v{vA2}, 4, v{vA0}
    s_waitcnt lgkmcnt(0)
    s_barrier
    ds_read_b128 {v(RB,4)}, v{vB0}
    ds_read_b128 {v(RB+4,4)}, v{vB3} offset:{32*128}
    ds_read_b128 {v(RB+8,4)}, v{vA2} offset:{64*128}
    s_waitcnt lgkmcnt(0)
    """)
    u_stores([RB, RB+4, RB+8], 'd')
    stamp(3)
    A(f"""
    buffer_load_dwordx4 {v(XR0,4)}, v{vXA}, s[{SX}:{SX+3}], 0 offen
    buffer_load_dword v{XS0}, v{vXB}, s[{SX}:{SX+3}], 0 offen
    buffer_load_dwordx4 {v(XR1,4)}, v{vXA}, s[{SX}:{SX+3}], 0 offen offset:1280
    buffer_load_dword v{XS1}, v{vXB}, s[{SX}:{SX+3}], 0 offen offset:1280
    v_lshlrev_b32 v{vA2}, 4, v1
    v_lshlrev_b32 v{vA0}, 2, v1
    global_load_dwordx4 {v(WR4,4)}, v{vA2}, s[22:23]
    global_load_dword v{WR1}, v{vA0}, s[22:23] offset:1024
    """)
    A(f"""
    v_lshlrev_b32 v{vA0}, 4, v0
    s_mul_i32 s{sT}, s2, 10240
    s_add_u32 s{sT}, s{sT}, {Y_OFF}
    buffer_store_dwordx4 {v(PZ,4)}, v{vA0}, s[{SWS}:{SWS+3}], s{sT} offen sc1
    s_add_u32 s{sT2}, s{sT}, 4096
    buffer_store_dwordx4 {v(PZ,4)}, v{vA0}, s[{SWS}:{SWS+3}], s{sT2} offen sc1
    s_add_u32 s{sT2}, s{sT}, 8192
    s_mul_i32 s{sT3}, s{sTAU}, 2560
    s_add_u32 s{sT3}, s{sT3}, {R_OFF} - 2048
    s_cmp_lt_u32 s{sW}, 2
    s_cselect_b32 s{sT2}, s{sT2}, s{sT3}
    buffer_store_dwordx4 {v(PZ,4)}, v{vA0}, s[{SWS}:{SWS+3}], s{sT2} offen sc1
    """)
    A(f"""
    v_lshrrev_b32 v{vB0}, 3, v1
    s_add_u32 s{sT3}, s{sT3}, 4096
    v_mov_b32 v{vB3}, s{sT3}
    s_lshl_b32 s{sT}, s{sTAU}, 7
    s_add_u32 s{sT2}, s{sT}, {G_OFF} - 512
    v_mov_b32 v{vA2}, s{sT2}
    v_cmp_eq_u32 vcc, 4, v{vB0}
    v_cndmask_b32 v{vB3}, v{vB3}, v{vA2}, vcc
    s_add_u32 s{sT2}, s{sT}, {D_OFF} - 640
    v_mov_b32 v{vA2}, s{sT2}
    v_cmp_eq_u32 vcc, 5, v{vB0}
    v_cndmask_b32 v{vB3}, v{vB3}, v{vA2}, vcc
    s_mul_i32 s{sJ}, s{sG}, 12
    s_add_u32 s{sJ}, s{sJ}, s{sM}
    s_sub_u32 s{sJ}, s{sJ}, 20
    s_lshl_b32 s{sT}, s{sJ}, 7
    s_add_u32 s{sT2}, s{sT}, {A_OFF} - 768
    s_cmp_ge_u32 s{sM}, 20
    s_cselect_b32 s{sT2}, s{sT2}, {WS_SIZE}
    v_mov_b32 v{vA2}, s{sT2}
    v_cmp_eq_u32 vcc, 6, v{vB0}
    v_cndmask_b32 v{vB3}, v{vB3}, v{vA2}, vcc
    v_mov_b32 v{vA2}, {WS_SIZE}
    v_cmp_eq_u32 vcc, 7, v{vB0}
    v_cndmask_b32 v{vB3}, v{vB3}, v{vA2}, vcc
    v_lshl_add_u32 v{vB3}, v1, 4, v{vB3}
    s_cmp_eq_u32 s{sW}, 0
    s_cselect_b32 s{sT}, 0, {WS_SIZE}
    buffer_store_dwordx4 {v(PZ,4)}, v{vB3}, s[{SWS}:{SWS+3}], s{sT} offen sc1
    s_cmp_ge_u32 s{sM}, 20
    s_cbranch_scc1 L_ffn_prep
    """)

    def b1_arrive():
        A(f"""
        s_waitcnt vmcnt(0)
        s_barrier
        s_lshl_b32 s{sT}, s{sG}, 2
        s_add_u32 s{sT}, s{sT}, 128
        s_cmp_eq_u32 s{sW}, 0
        s_cselect_b32 s{sT}, s{sT}, 256
        v_mov_b32 v2, 1
        s_mov_b64 exec, 1
        buffer_atomic_add v2, off, s[{SDBG}:{SDBG+3}], s{sT} sc1
        s_mov_b64 exec, -1
        """)

    vKL, vAW, vUW, vBR, vUE, vYW, vYR, vYG = 4, 5, 6, 7, 8, 9, 10, 11
    KT = 112
    A(f"""
    s_mul_i32 s{sT}, s{sW}, {4*KC_STRIDE}
    v_lshl_add_u32 v{vKL}, v1, 4, s{sT}
    s_waitcnt vmcnt({1+3+6+4})
    """)
    for it in range(5):
        w = KL + 6*it
        t = KT + 12*(it % 2)
        if it == 4: A("s_mov_b64 exec, 15")
        for k in range(4): A(f"v_alignbit_b32 v{t+k}, v{w+k+1}, v{w+k}, 16")
        A(f"ds_write_b128 v{vKL}, {v(t,4)} offset:{0*KC_STRIDE + 1024*it}")
        A(f"v_pk_mov_b32 {v(t+4,2)}, {v(w,2)}, {v(w+2,2)} op_sel:[1,0]")
        A(f"v_pk_mov_b32 {v(t+6,2)}, {v(w+2,2)}, {v(w+4,2)} op_sel:[1,0]")
        A(f"ds_write_b128 v{vKL}, {v(t+4,4)} offset:{1*KC_STRIDE + 1024*it}")
        for k in range(4): A(f"v_alignbit_b32 v{t+8+k}, v{w+k+2}, v{w+k+1}, 16")
        A(f"ds_write_b128 v{vKL}, {v(t+8,4)} offset:{2*KC_STRIDE + 1024*it}")
        A(f"ds_write_b128 v{vKL}, {v(w+2,4)} offset:{3*KC_STRIDE + 1024*it}")
    A("s_mov_b64 exec, -1")
    A(f"""
    v_and_b32 v2, 3, v1
    v_mul_u32_u24 v{vAW}, {KC_STRIDE}, v2
    v_lshrrev_b32 v3, 2, v1
    v_lshl_add_u32 v{vAW}, v3, 4, v{vAW}
    v_add_u32 v{vAW}, s{sT}, v{vAW}
    s_mul_i32 s{sT2}, s{sW}, {4*UQ}
    s_add_u32 s{sT2}, s{sT2}, {L_U}
    v_mul_u32_u24 v{vUW}, {UQ}, v2
    v_lshl_add_u32 v{vUW}, v3, 4, v{vUW}
    v_add_u32 v{vUW}, s{sT2}, v{vUW}
    v_and_b32 v2, 15, v1
    v_lshrrev_b32 v3, 4, v1
    v_sub_u32 v{vBR}, v2, v3
    v_lshl_add_u32 v{vBR}, v{vBR}, 4, s{sT2}
    v_add_u32 v{vBR}, 64, v{vBR}
    v_mul_u32_u24 v{vUE}, {UQ}, v3
    v_lshl_add_u32 v{vUE}, v2, 4, v{vUE}
    v_add_u32 v{vUE}, s{sT2}, v{vUE}
    v_mov_b32 v{KT}, 0
    v_mov_b32 v{KT+1}, 0
    v_mov_b32 v{KT+2}, 0
    v_mov_b32 v{KT+3}, 0
    ds_write_b128 v{vUE}, {v(KT,4)}
    v_mul_u32_u24 v{vYW}, 272, v2
    v_lshl_add_u32 v{vYW}, v3, 6, v{vYW}
    s_lshl_b32 s{sT}, s{sW}, 4
    s_add_u32 s{sT}, s{sT}, {L_Y}
    v_add_u32 v{vYW}, s{sT}, v{vYW}
    v_lshrrev_b32 v2, 4, v0
    v_mul_u32_u24 v{vYR}, 272, v2
    v_and_b32 v3, 15, v0
    v_lshl_add_u32 v{vYR}, v3, 4, v{vYR}
    v_add_u32 v{vYR}, {L_Y}, v{vYR}
    v_lshrrev_b32 v2, 3, v0
    v_mul_u32_u24 v{vYG}, 20480, v2
    v_and_b32 v3, 7, v0
    v_lshl_add_u32 v{vYG}, v3, 4, v{vYG}
    s_mul_i32 s{sYO}, s{sG}, 20
    s_add_u32 s{sYO}, s{sYO}, s{sM}
    s_lshl_b32 s{sYO}, s{sYO}, 7
    s_add_u32 s{sYO}, s{sYO}, {Y_OFF}
    s_waitcnt lgkmcnt(0)
    s_bitcmp1_b32 s{sCH}, 0
    s_cselect_b32 s{sT}, 16, 0
    s_lshr_b32 s{sDLO}, s{sDLO}, s{sT}
    s_and_b32 s{sDLO}, s{sDLO}, 0xffff
    s_lshl_b32 s{sDHI}, s{sDLO}, 16
    """)
    stamp(4)
    b1_arrive()
    WV = 112
    def wreg(g, off, n):
        return a(18*g + off, n) if g < 14 else v(WV + 18*(g-14) + off, n)
    order = []
    for st in range(4): order += [15-st, 11-st, 7-st, 3-st]
    for g in order:
        for x in range(4):
            A(f"ds_read_b128 {wreg(g,4*x,4)}, v{vAW} offset:{256*g + 16*x}")
        A(f"ds_read_b64 {wreg(g,16,2)}, v{vAW} offset:{256*g + 64}")
    stamp(5)
    A(f"""
    s_lshl_b32 s{sT}, s{sG}, 2
    s_mov_b32 s{sCNT}, 0
    L_b0:
    buffer_load_dword v2, off, s[{SDBG}:{SDBG+3}], s{sT} offset:64 sc1
    s_add_u32 s{sCNT}, s{sCNT}, 1
    s_cmp_gt_u32 s{sCNT}, {SPIN}
    s_cbranch_scc1 L_b0x
    s_waitcnt vmcnt(0)
    v_cmp_gt_u32 vcc, 32, v2
    s_cbranch_vccnz L_b0
    L_b0x:
    s_lshl_b32 s{sT}, s{sCH}, 12
    v_lshlrev_b32 v3, 4, v1
    s_mov_b32 s{sCNT}, 0
    """)
    stamp(6)
    UL = 148
    A("L_upoll:")
    for it in range(4):
        A(f"buffer_load_dwordx4 {v(UL+4*it,4)}, v3, s[{SWS}:{SWS+3}], s{sT} offen offset:{1024*it} sc1")
    A(f"""
    s_add_u32 s{sCNT}, s{sCNT}, 1
    s_cmp_gt_u32 s{sCNT}, {SPIN}
    s_cbranch_scc1 L_upollx
    s_waitcnt vmcnt(3)
    v_max3_u32 v2, v{UL}, v{UL+1}, v{UL+2}
    s_waitcnt vmcnt(2)
    v_max3_u32 v2, v2, v{UL+3}, v{UL+4}
    v_max3_u32 v2, v2, v{UL+5}, v{UL+6}
    s_waitcnt vmcnt(1)
    v_max3_u32 v2, v2, v{UL+7}, v{UL+8}
    v_max3_u32 v2, v2, v{UL+9}, v{UL+10}
    s_waitcnt vmcnt(0)
    v_max3_u32 v2, v2, v{UL+11}, v{UL+12}
    v_max3_u32 v2, v2, v{UL+13}, v{UL+14}
    v_max_u32 v2, v2, v{UL+15}
    v_cmp_eq_u32 vcc, -1, v2
    s_cbranch_vccnz L_upoll
    L_upollx:
    s_waitcnt vmcnt(0)
    """)
    stamp(7)
    for it in range(4):
        A(f"ds_write_b128 v{vUW}, {v(UL+4*it,4)} offset:{256 + 256*it}")
    A(f"v_and_b32 v3, 7, v1\nv_lshlrev_b32 v3, 2, v3\nbuffer_load_dword v12, v3, s[{SDBG}:{SDBG+3}], 0 offen offset:128 sc1")
    A("s_waitcnt lgkmcnt(0)")
    ACC, BB = 32, 64
    def breg(st, q): return BB + 16*(st % 3) + 4*q
    def bload(st):
        return [f"ds_read_b128 {v(breg(st,q),4)}, v{vBR} offset:{q*UQ + 64*st}" for q in range(4)]
    for st in (0, 1):
        for l in bload(st): A(l)
    lds_issued = [('B', 0)]*4 + [('B', 1)]*4
    def lds(tag, text):
        A(text); lds_issued.append(tag)
    def wait_for(tag):
        idx = max(i for i, t in enumerate(lds_issued) if t == tag)
        n = len(lds_issued) - 1 - idx
        A(f"s_waitcnt lgkmcnt({min(n,15)})")
    EU, EY = 148, 152
    def epi_ops(nt):
        ops = []
        eu = EU + 8*(nt % 2); ey = EY + 8*(nt % 2)
        ops.append(('lds', ('U', nt), f"ds_read_b128 {v(eu,4)}, v{vUE} offset:{256 + 256*nt}"))
        ops.append(('wait', ('U', nt), None))
        for x in range(8):
            j = 7 - x
            acc = ACC + 8*nt + x
            ops.append(('v', None, f"v_dot2c_f32_bf16 v{acc}, s{sDHI if (j & 1) else sDLO}, v{eu + (j >> 1)}"))
        for b in range(4):
            acc = ACC + 8*nt + 2*b
            ops.append(('v', None, f"v_cvt_pk_bf16_f32 v{ey+b}, v{acc}, v{acc+1}"))
        ops.append(('lds', ('W', nt), f"ds_write_b128 v{vYW}, {v(ey,4)} offset:{4352*nt}"))
        ops.append(('wait', ('W', nt), None))
        ops.append(('x', None, "s_barrier"))
        ops.append(('lds', ('R', nt), f"ds_read_b128 {v(eu,4)}, v{vYR} offset:{4352*nt}"))
        if nt == 0:
            ops.append(('b1', None, None))
        ops.append(('x', None, f"s_add_u32 s{sT}, s{sYO}, {32*20480*nt}"))
        ops.append(('wait', ('R', nt), None))
        ops.append(('x', None, f"buffer_store_dwordx4 {v(eu,4)}, v{vYG}, s[{SWS}:{SWS+3}], s{sT} offen sc1"))
        return ops
    def emit_op(o):
        kind, tag, text = o
        if kind == 'lds': lds(tag, text)
        elif kind == 'wait': wait_for(tag)
        elif kind == 'b1':
            A(f"""
            s_waitcnt vmcnt(0)
            v_cmp_gt_u32 vcc, 32, v12
            s_cbranch_vccz L_b1x
            s_mov_b32 s{sCNT}, 0
            L_b1:
            buffer_load_dword v12, v3, s[{SDBG}:{SDBG+3}], 0 offen offset:128 sc1
            s_add_u32 s{sCNT}, s{sCNT}, 1
            s_cmp_gt_u32 s{sCNT}, {SPIN}
            s_cbranch_scc1 L_b1x
            s_waitcnt vmcnt(0)
            v_cmp_gt_u32 vcc, 32, v12
            s_cbranch_vccnz L_b1
            L_b1x:
            """)
        else: A(text)
    pending = []
    started = set()
    for st in range(16):
        e = st - 3
        wait_for(('B', st))
        mf = []
        for q in range(4):
            for nt in range(3, -1, -1):
                g = 4*nt - e
                if g < 0 or g > 4*nt + 3: continue
                for mt in range(2):
                    acc = ACC + 8*nt + 4*mt
                    c = v(acc, 4) if (nt, mt) in started else "0"
                    started.add((nt, mt))
                    mf.append(f"v_mfma_f32_16x16x32_bf16 {v(acc,4)}, {wreg(g, 12-4*q+2*mt, 4)}, {v(breg(st,q),4)}, {c}")
        nb = bload(st + 2) if st + 2 < 16 else []
        for i, m in enumerate(mf):
            A(m)
            if i < len(nb) * 2 and i % 2 == 1:
                lds(('B', st + 2), nb[i // 2])
            elif pending and i >= 1:
                k = 0
                while pending and k < 2:
                    o = pending.pop(0); emit_op(o)
                    if o[0] in ('v', 'lds'): k += 1
                    if o[0] == 'wait' : k += 1
        if st % 4 == 3:
            while pending: emit_op(pending.pop(0))
            pending = [('x', None, "s_nop 0")] + epi_ops(st // 4)
    while pending: emit_op(pending.pop(0))
    stamp(8)
    A("s_branch L_p2")

    A("L_ffn_prep:")
    FL = 64
    A(f"""
    v_lshrrev_b32 v2, 1, v1
    v_and_b32 v3, 1, v1
    s_mul_i32 s{sT}, s{sW}, {160*3072}
    s_lshl_b32 s{sT2}, s{sJ}, 5
    s_add_u32 s{sT}, s{sT}, s{sT2}
    v_mul_u32_u24 v4, 3072, v2
    v_lshl_add_u32 v4, v3, 4, v4
    v_add_u32 v4, s{sT}, v4
    """)
    for i in range(5):
        A(f"global_load_dwordx4 {v(FL+4*i,4)}, v4, s[24:25]")
        A(f"global_load_dwordx4 {v(FL+20+4*i,4)}, v4, s[26:27]")
        if i < 4: A(f"v_add_u32 v4, {32*3072}, v4")
    sJD = sR0
    DL = 148
    A(f"""
    s_sub_u32 s{sT3}, s{sM}, 20
    s_mul_i32 s{sJD}, s{sG}, 5
    s_add_u32 s{sJD}, s{sJD}, s{sT3}
    s_cmp_lt_u32 s{sT3}, 5
    s_cbranch_scc0 L_nodown
    s_mul_i32 s{sT}, s{sW}, {384*1280}
    s_lshl_b32 s{sT2}, s{sJD}, 5
    s_add_u32 s{sT}, s{sT}, s{sT2}
    v_mul_u32_u24 v4, 1280, v2
    v_lshl_add_u32 v4, v3, 4, v4
    v_add_u32 v4, s{sT}, v4
    """)
    for i in range(12):
        A(f"global_load_dwordx4 {v(DL+4*i,4)}, v4, s[28:29]")
        if i < 11: A(f"v_add_u32 v4, {32*1280}, v4")
    A("L_nodown:")
    b1_arrive()
    A(f"""
    s_mul_i32 s{sT}, s{sW}, {4*KC_STRIDE}
    v_lshl_add_u32 v4, v1, 4, s{sT}
    v_lshrrev_b32 v2, 4, v1
    v_bfe_u32 v3, v1, 2, 2
    v_lshlrev_b32 v5, 8, v2
    v_lshl_add_u32 v5, v3, 5, v5
    v_and_b32 v3, 3, v1
    v_lshl_add_u32 v5, v3, 3, v5
    v_add_u32 v5, s{sT}, v5
    """)
    for i in range(10):
        A(f"ds_write_b128 v4, {v(FL+4*i,4)} offset:{1024*i}")
    A("s_waitcnt lgkmcnt(0)")
    AG, AU, AD = 0, 20, 40
    for i in range(10):
        A(f"ds_read_b64_tr_b16 {a(4*i,2)}, v5 offset:{1024*i}")
        A(f"ds_read_b64_tr_b16 {a(4*i+2,2)}, v5 offset:{1024*i+128}")
    A("s_waitcnt lgkmcnt(0)")
    for i in range(12):
        A(f"ds_write_b128 v4, {v(DL+4*i,4)} offset:{1024*i}")
    A("s_waitcnt lgkmcnt(0)")
    for i in range(12):
        A(f"ds_read_b64_tr_b16 {a(AD+4*i,2)}, v5 offset:{1024*i}")
        A(f"ds_read_b64_tr_b16 {a(AD+4*i+2,2)}, v5 offset:{1024*i+128}")
    A("s_waitcnt lgkmcnt(0)")
    stamp(8)

    A("L_p2:")
    XF, LF = 32, 52
    DF = 72
    def xraw(t, p): return (XR0, XR1)[t] + p if p < 4 else (XS0, XS1)[t]
    Z, Z1, ZE = 2, 3, 12
    def unpack(dst, src):
        A(f"v_lshlrev_b32 v{dst}, 16, v{src}\nv_and_b32 v{dst+1}, s{sMASK}, v{src}")
    def reduce2(a0, a1, fill=None):
        fill = list(fill or [])
        def F(n):
            for _ in range(n):
                if fill: A(fill.pop(0))
        A(f"v_add_f32 v{Z}, v{a0}, v{a0+1}\nv_add_f32 v{Z1}, v{a1}, v{a1+1}")
        F(2)
        A(f"v_permlane32_swap_b32 v{Z}, v{Z1}")
        A(f"v_add_f32 v{Z}, v{Z}, v{Z1}")
        for m in ("quad_perm:[1,0,3,2]", "quad_perm:[2,3,0,1]", "row_half_mirror", "row_mirror"):
            F(2)
            A(f"v_add_f32_dpp v{Z}, v{Z}, v{Z} {m} row_mask:0xf bank_mask:0xf")
        F(2)
        A(f"v_add_f32_dpp v{Z}, v{Z}, v{Z} row_bcast:15 row_mask:0xa bank_mask:0xf")
        return fill
    def rnd(r):
        A(f"v_cvt_pk_bf16_f32 v{r}, v{r}, v{r}\nv_lshlrev_b32 v{r}, 16, v{r}")
    def stats(src, dst, S0):
        for t in range(2):
            A(f"v_pk_add_f32 {v(S0+2*t,2)}, {v(src+10*t,2)}, {v(src+10*t+2,2)}")
        for p in range(2, 5):
            for t in range(2):
                A(f"v_pk_add_f32 {v(S0+2*t,2)}, {v(S0+2*t,2)}, {v(src+10*t+2*p,2)}")
        reduce2(S0, S0+2)
        A(f"""
        v_mul_f32 v{Z}, {1.0/640!r}, v{Z}
        v_cvt_pk_bf16_f32 v{Z1}, v{Z}, v{Z}
        v_lshlrev_b32 v{Z1}, 16, v{Z1}
        v_sub_f32 v{ZE}, v{Z}, v{Z1}
        v_readlane_b32 s{sP0}, v{Z1}, 16
        v_readlane_b32 s{sP1}, v{Z1}, 48
        """)
        for p in range(5):
            for t in range(2):
                sp = (sP0, sP1)[t]
                A(f"v_pk_add_f32 {v(dst+10*t+2*p,2)}, {v(src+10*t+2*p,2)}, s[{sp}:{sp+1}] op_sel_hi:[1,0] neg_lo:[0,1] neg_hi:[0,1]")
        for p in range(5):
            for t in range(2):
                d = v(dst+10*t+2*p, 2)
                if p == 0: A(f"v_pk_mul_f32 {v(S0+2*t,2)}, {d}, {d}")
                else: A(f"v_pk_fma_f32 {v(S0+2*t,2)}, {d}, {d}, {v(S0+2*t,2)}")
        fill = []
        if EXACT:
            for p in range(5):
                for t in range(2):
                    d = dst+10*t+2*p
                    fill += [f"v_cvt_pk_bf16_f32 v{d}, v{d}, v{d+1}", f"v_and_b32 v{d+1}, s{sMASK}, v{d}", f"v_lshlrev_b32 v{d}, 16, v{d}"]
        fill = reduce2(S0, S0+2, fill)
        A(f"""
        v_mul_f32 v{Z}, {1.0/640!r}, v{Z}
        v_fma_f32 v{Z}, -v{ZE}, v{ZE}, v{Z}
        """)
        rnd(Z)
        A(f"v_add_f32 v{Z}, {1e-5!r}, v{Z}")
        rnd(Z)
        A(f"v_sqrt_f32 v{Z}, v{Z}")
        for _ in range(min(2, len(fill))): A(fill.pop(0))
        rnd(Z)
        A(f"v_rcp_f32 v{Z}, v{Z}")
        for f in fill: A(f)
        A(f"v_readlane_b32 s{sP0}, v{Z}, 16\nv_readlane_b32 s{sP1}, v{Z}, 48")
        for p in range(5):
            for t in range(2):
                sp = (sP0, sP1)[t]
                A(f"v_pk_mul_f32 {v(dst+10*t+2*p,2)}, {v(dst+10*t+2*p,2)}, s[{sp}:{sp+1}] op_sel_hi:[1,0]")
    A("s_waitcnt vmcnt(4)")
    for t in range(2):
        for p in range(5): unpack(XF+10*t+2*p, xraw(t, p))
    stats(XF, LF, 92)
    for t in range(2):
        for p in range(5):
            d = LF+10*t+2*p
            A(f"v_cvt_pk_bf16_f32 v{d}, v{d}, v{d+1}\nv_and_b32 v{d+1}, s{sMASK}, v{d}\nv_lshlrev_b32 v{d}, 16, v{d}")
    vYA, vPW, vPR, vPS = 4, 5, 6, 7
    YL = 96
    A(f"""
    v_lshrrev_b32 v{vYA}, 2, v0
    v_and_b32 v3, 3, v0
    v_lshlrev_b32 v{vYA}, 7, v{vYA}
    v_lshl_add_u32 v{vYA}, v3, 4, v{vYA}
    s_mul_i32 s{sYO}, s{sTB16}, 20480
    s_and_b32 s{sT}, s{sTAU}, 1
    s_lshl_b32 s{sT}, s{sT}, 6
    s_add_u32 s{sYO}, s{sYO}, s{sT}
    s_add_u32 s{sYO}, s{sYO}, {Y_OFF}
    s_add_u32 s{sT2}, s{sYO}, 8192
    s_add_u32 s{sT3}, s{sYO}, 16384
    s_cmp_lt_u32 s{sW}, 2
    s_cselect_b32 s{sT3}, s{sT3}, {WS_SIZE}
    v_lshlrev_b32 v{vPW}, 2, v0
    v_add_u32 v{vPW}, {L_P2}, v{vPW}
    s_mul_i32 s{sT}, s{sW}, 2560
    s_add_u32 s{sT}, s{sT}, {L_P2}
    v_lshl_add_u32 v{vPR}, v1, 5, s{sT}
    s_add_u32 s{sT}, s{sT}, 2048
    v_lshl_add_u32 v{vPS}, v1, 3, s{sT}
    s_mov_b32 s{sCNT}, 0
    """)
    stamp(9)
    A(f"""
    s_cmp_lt_u32 s{sM}, 20
    s_cbranch_scc1 L_ypoll
    L_yprobe:
    s_mov_b64 exec, 1
    buffer_load_dword v{YL}, v{vYA}, s[{SWS}:{SWS+3}], s{sYO} offen sc1
    s_add_u32 s{sCNT}, s{sCNT}, 1
    s_cmp_gt_u32 s{sCNT}, {SPIN}
    s_waitcnt vmcnt(0)
    v_cmp_eq_u32 vcc, -1, v{YL}
    s_mov_b64 exec, -1
    s_cbranch_scc1 L_ypoll
    s_cbranch_vccz L_ypoll
    s_sleep 6
    s_branch L_yprobe
    L_ypoll:
    buffer_load_dwordx4 {v(YL,4)}, v{vYA}, s[{SWS}:{SWS+3}], s{sYO} offen sc1
    buffer_load_dwordx4 {v(YL+4,4)}, v{vYA}, s[{SWS}:{SWS+3}], s{sT2} offen sc1
    buffer_load_dwordx4 {v(YL+8,4)}, v{vYA}, s[{SWS}:{SWS+3}], s{sT3} offen sc1
    s_add_u32 s{sCNT}, s{sCNT}, 1
    s_cmp_gt_u32 s{sCNT}, {SPIN}
    s_cbranch_scc1 L_ypollx
    s_waitcnt vmcnt(2)
    v_max3_u32 v2, v{YL}, v{YL+1}, v{YL+2}
    s_waitcnt vmcnt(1)
    v_max3_u32 v2, v2, v{YL+3}, v{YL+4}
    v_max3_u32 v2, v2, v{YL+5}, v{YL+6}
    s_waitcnt vmcnt(0)
    v_max3_u32 v2, v2, v{YL+7}, v{YL+8}
    v_max3_u32 v2, v2, v{YL+9}, v{YL+10}
    v_max_u32 v2, v2, v{YL+11}
    v_cmp_eq_u32 vcc, -1, v2
    s_cbranch_vccnz L_ypoll
    L_ypollx:
    s_waitcnt vmcnt(0)
    """)
    stamp(10)
    for it in range(2):
        A(f"ds_write2st64_b32 v{vPW}, v{YL+4*it}, v{YL+4*it+1} offset0:{4*it} offset1:{10+4*it}")
        A(f"ds_write2st64_b32 v{vPW}, v{YL+4*it+2}, v{YL+4*it+3} offset0:{20+4*it} offset1:{30+4*it}")
    A(f"""
    s_cmp_lt_u32 s{sW}, 2
    s_cbranch_scc0 L_pw2
    ds_write2st64_b32 v{vPW}, v{YL+8}, v{YL+9} offset0:8 offset1:18
    ds_write2st64_b32 v{vPW}, v{YL+10}, v{YL+11} offset0:28 offset1:38
    L_pw2:
    s_waitcnt lgkmcnt(0)
    s_barrier
    """)
    Q, YF, HF, HP, LP = 96, 108, 128, 148, 160
    A(f"""
    ds_read_b128 {v(Q,4)}, v{vPR}
    ds_read_b128 {v(Q+4,4)}, v{vPR} offset:16
    ds_read_b64 {v(Q+8,2)}, v{vPS}
    """)
    for i in range(10):
        if i == 0: A("s_waitcnt lgkmcnt(2)")
        if i == 4: A("s_waitcnt lgkmcnt(1)")
        if i == 8: A("s_waitcnt lgkmcnt(0)")
        A(f"v_lshlrev_b32 v{YF+i}, 16, v{Q+i}\nv_and_b32 v{YF+10+i}, s{sMASK}, v{Q+i}")
    def hp(t, p): return HP + 6*t + p
    def lp(t, p): return LP + 6*t + p
    for p in range(5):
        for t in range(2):
            o = 10*t + 2*p
            if EXACT:
                A(f"v_pk_mul_f32 {v(YF+o,2)}, {v(LF+o,2)}, {v(YF+o,2)}")
                A(f"v_cvt_pk_bf16_f32 v{YF+o}, v{YF+o}, v{YF+o+1}\nv_and_b32 v{YF+o+1}, s{sMASK}, v{YF+o}\nv_lshlrev_b32 v{YF+o}, 16, v{YF+o}")
                A(f"v_pk_add_f32 {v(YF+o,2)}, {v(XF+o,2)}, {v(YF+o,2)}")
            else:
                A(f"v_pk_fma_f32 {v(YF+o,2)}, {v(LF+o,2)}, {v(YF+o,2)}, {v(XF+o,2)}")
            A(f"v_cvt_pk_bf16_f32 v{hp(t,p)}, v{YF+o}, v{YF+o+1}")
            unpack(HF+o, hp(t, p))
    stats(HF, DF, 92)
    RA = 92
    def wr(p): return WR4 + p if p < 4 else WR1
    for p in range(5):
        for t in range(2):
            o = 10*t + 2*p
            A(f"v_cvt_pk_bf16_f32 v{lp(t,p)}, v{DF+o}, v{DF+o+1}")
    A(f"v_mov_b32 v{RA+1}, 0\nv_mov_b32 v{RA+3}, 0")
    for p in range(5):
        for t in range(2):
            if p == 0: A(f"v_dot2_f32_bf16 v{RA+2*t}, v{lp(t,p)}, v{wr(p)}, 0")
            else: A(f"v_dot2_f32_bf16 v{RA+2*t}, v{lp(t,p)}, v{wr(p)}, v{RA+2*t}")
    vKI, vKA = 8, 9
    fill = [f"v_lshrrev_b32 v{vKI}, 5, v1",
            f"s_lshl_b32 s{sT}, s{sTAU}, 3",
            f"s_lshl_b32 s{sT2}, s{sW}, 1",
            f"s_add_u32 s{sT}, s{sT}, s{sT2}",
            f"s_sub_u32 s{sT}, 2047, s{sT}",
            f"s_lshl_b32 s{sT2}, s{sW}, 3",
            f"s_add_u32 s{sT2}, s{sT2}, {L_S}",
            f"v_lshl_add_u32 v{vKA}, v{vKI}, 2, s{sT2}",
            f"v_sub_u32 v{vKI}, s{sT}, v{vKI}",
            f"v_mov_b32 v10, {L_S}"]
    fill = reduce2(RA, RA+2, fill)
    for f in fill: A(f)
    KK = 172
    A(f"""
    v_cvt_pk_bf16_f32 v{Z}, v{Z}, v{Z}
    v_ashrrev_i32 v{Z1}, 31, v{Z}
    v_or_b32 v{Z1}, 0x80000000, v{Z1}
    v_xor_b32 v{Z}, v{Z}, v{Z1}
    v_and_or_b32 v{Z}, v{Z}, s{sMASK}, v{vKI}
    s_mov_b32 exec_lo, 0x10000
    s_mov_b32 exec_hi, 0x10000
    ds_write_b32 v{vKA}, v{Z}
    s_mov_b64 exec, -1
    s_waitcnt lgkmcnt(0)
    s_barrier
    ds_read_b128 {v(KK,4)}, v10
    ds_read_b128 {v(KK+4,4)}, v10 offset:16
    s_lshl_b32 s{sT}, s{sTAU}, 7
    s_add_u32 s{sT}, s{sT}, {G_OFF}
    s_cmp_eq_u32 s{sW}, 0
    s_cselect_b32 s{sT}, s{sT}, {WS_SIZE}
    s_waitcnt lgkmcnt(1)
    v_max_u32 v{KK+8}, v{KK}, v{KK+1}
    v_min_u32 v{KK+9}, v{KK}, v{KK+1}
    """)
    for i in range(2, 8):
        if i == 4: A("s_waitcnt lgkmcnt(0)")
        A(f"v_med3_u32 v{KK+9}, v{KK+8}, v{KK+9}, v{KK+i}\nv_max_u32 v{KK+8}, v{KK+8}, v{KK+i}")
    A(f"""
    s_mov_b64 exec, 1
    buffer_store_dwordx2 {v(KK+8,2)}, off, s[{SWS}:{SWS+3}], s{sT} sc1
    s_mov_b64 exec, -1
    v_readfirstlane_b32 s{sK1}, v{KK+8}
    v_readfirstlane_b32 s{sK2}, v{KK+9}
    """)
    stamp(11)
    vRA, vRB = 4, 5
    A(f"v_lshlrev_b32 v{vRA}, 4, v1\nv_lshlrev_b32 v{vRB}, 2, v1\nv_add_u32 v{vRB}, 1024, v{vRB}")
    def publish(src, off, tagname):
        SEL = 184
        for slot, sk in enumerate((sK1, sK2)):
            A(f"""
            s_not_b32 s{sT}, s{sk}
            s_bfe_u32 s{sT2}, s{sT}, 0x20001
            s_cmp_eq_u32 s{sT2}, s{sW}
            s_cbranch_scc0 L_{tagname}{slot}
            s_bitcmp1_b32 s{sT}, 0
            s_cselect_b64 s[{sE0}:{sE0+1}], -1, 0
            s_mul_i32 s{sT3}, s{sTAU}, 2560
            s_add_u32 s{sT3}, s{sT3}, {off + 1280*slot}
            """)
            for p in range(5):
                A(f"v_cndmask_b32 v{SEL+6*slot+p}, v{src+p}, v{src+6+p}, s[{sE0}:{sE0+1}]")
            A(f"""
            buffer_store_dwordx4 {v(SEL+6*slot,4)}, v{vRA}, s[{SWS}:{SWS+3}], s{sT3} offen sc1
            buffer_store_dword v{SEL+6*slot+4}, v{vRB}, s[{SWS}:{SWS+3}], s{sT3} offen sc1
            L_{tagname}{slot}:
            """)
    publish(LP, R_OFF, 'pl')
    OP = 196
    for p in range(5):
        for t in range(2):
            o = 10*t + 2*p
            unpack(DF+o, lp(t, p))
            A(f"v_pk_add_f32 {v(DF+o,2)}, {v(DF+o,2)}, {v(HF+o,2)}")
            A(f"v_cvt_pk_bf16_f32 v{OP+6*t+p}, v{DF+o}, v{DF+o+1}")
    A(f"""
    buffer_store_dwordx4 {v(OP,4)}, v{vXA}, s[{SOUT}:{SOUT+3}], 0 offen sc1
    buffer_store_dword v{OP+4}, v{vXB}, s[{SOUT}:{SOUT+3}], 0 offen sc1
    buffer_store_dwordx4 {v(OP+6,4)}, v{vXA}, s[{SOUT}:{SOUT+3}], 0 offen offset:1280 sc1
    buffer_store_dword v{OP+10}, v{vXB}, s[{SOUT}:{SOUT+3}], 0 offen offset:1280 sc1
    """)
    publish(HP, H_OFF, 'ph')
    A(f"""
    s_waitcnt vmcnt(0)
    s_barrier
    s_lshl_b32 s{sT}, s{sTAU}, 7
    s_add_u32 s{sT}, s{sT}, {D_OFF}
    s_cmp_eq_u32 s{sW}, 0
    s_cselect_b32 s{sT}, s{sT}, {WS_SIZE}
    v_mov_b32 v2, 1
    s_mov_b64 exec, 1
    buffer_store_dword v2, off, s[{SWS}:{SWS+3}], s{sT} sc1
    s_mov_b64 exec, -1
    """)
    stamp(12)
    A(f"s_cmp_lt_u32 s{sM}, 20\ns_cbranch_scc1 L_fin")

    K1, K2, T1, T2 = 32, 33, 34, 35
    A(f"""
    v_lshlrev_b32 v4, 7, v0
    s_mov_b32 s{sT}, {G_OFF}
    s_mov_b32 s{sCNT}, 0
    L_gpoll:
    buffer_load_dwordx2 {v(K1,2)}, v4, s[{SWS}:{SWS+3}], s{sT} offen sc1
    s_add_u32 s{sCNT}, s{sCNT}, 1
    s_cmp_gt_u32 s{sCNT}, {SPIN}
    s_cbranch_scc1 L_gpollx
    s_waitcnt vmcnt(0)
    v_max_u32 v2, v{K1}, v{K2}
    v_cmp_eq_u32 vcc, -1, v2
    s_and_b64 exec, exec, vcc
    s_cbranch_execnz L_gpoll
    L_gpollx:
    s_mov_b64 exec, -1
    s_waitcnt vmcnt(0)
    """)
    stamp(13)
    def merge_rows():
        for m in ("quad_perm:[1,0,3,2]", "quad_perm:[2,3,0,1]", "row_half_mirror", "row_mirror"):
            A(f"""
            v_min_u32_dpp v{T1}, v{K1}, v{K1} {m} row_mask:0xf bank_mask:0xf
            v_max_u32_dpp v{T2}, v{K2}, v{K2} {m} row_mask:0xf bank_mask:0xf
            v_max_u32_dpp v{K1}, v{K1}, v{K1} {m} row_mask:0xf bank_mask:0xf
            v_max_u32 v{K2}, v{T1}, v{T2}
            """)
    merge_rows()
    A(f"""
    v_lshrrev_b32 v5, 4, v0
    v_lshlrev_b32 v5, 3, v5
    v_add_u32 v5, {L_S+64}, v5
    v_and_b32 v6, 15, v1
    v_lshlrev_b32 v6, 3, v6
    v_add_u32 v6, {L_S+64}, v6
    ds_write_b64 v5, {v(K1,2)}
    s_waitcnt lgkmcnt(0)
    s_barrier
    ds_read_b64 {v(K1,2)}, v6
    s_waitcnt lgkmcnt(0)
    """)
    merge_rows()
    sTA, sTB, sRA, sRB = sP0, sP0+1, sP1, sP1+1
    A(f"""
    v_readfirstlane_b32 s{sK1}, v{K1}
    v_readfirstlane_b32 s{sK2}, v{K2}
    s_not_b32 s{sTA}, s{sK1}
    s_and_b32 s{sTA}, s{sTA}, 0x7ff
    s_not_b32 s{sTB}, s{sK2}
    s_and_b32 s{sTB}, s{sTB}, 0x7ff
    s_lshr_b32 s{sT}, s{sTA}, 3
    s_lshr_b32 s{sT2}, s{sTB}, 3
    s_mul_i32 s{sRA}, s{sT}, 2560
    s_mul_i32 s{sRB}, s{sT2}, 2560
    s_cmp_eq_u32 s{sT}, s{sT2}
    s_cselect_b32 s{sT3}, 1280, 0
    s_add_u32 s{sRB}, s{sRB}, s{sT3}
    v_and_b32 v2, 1, v1
    v_cmp_eq_u32 vcc, 1, v2
    v_mov_b32 v7, s{sRA}
    v_mov_b32 v8, s{sRB}
    v_cndmask_b32 v7, v7, v8, vcc
    v_lshrrev_b32 v3, 4, v1
    v_lshl_add_u32 v7, v3, 4, v7
    s_mul_i32 s{sT3}, s{sW}, 320
    s_add_u32 s{sT3}, s{sT3}, {R_OFF}
    s_mov_b32 s{sCNT}, 0
    L_xpoll:
    """)
    XS = 40
    for i in range(5):
        A(f"buffer_load_dwordx4 {v(XS+4*i,4)}, v7, s[{SWS}:{SWS+3}], s{sT3} offen offset:{64*i} sc1")
    A(f"""
    s_add_u32 s{sCNT}, s{sCNT}, 1
    s_cmp_gt_u32 s{sCNT}, {SPIN}
    s_cbranch_scc1 L_xpollx
    s_waitcnt vmcnt(0)
    v_max3_u32 v2, v{XS}, v{XS+1}, v{XS+2}
    """)
    for i in range(3, 19, 2): A(f"v_max3_u32 v2, v2, v{XS+i}, v{XS+i+1}")
    A(f"""
    v_max_u32 v2, v2, v{XS+19}
    v_cmp_eq_u32 vcc, -1, v2
    s_cbranch_vccnz L_xpoll
    L_xpollx:
    s_waitcnt vmcnt(0)
    """)
    stamp(14)
    DG, DU = 64, 68
    for i in range(5):
        A(f"v_mfma_f32_16x16x32_bf16 {v(DG,4)}, {a(AG+4*i,4)}, {v(XS+4*i,4)}, {v(DG,4) if i else 0}")
        A(f"v_mfma_f32_16x16x32_bf16 {v(DU,4)}, {a(AU+4*i,4)}, {v(XS+4*i,4)}, {v(DU,4) if i else 0}")
    L_F = L_S + 256
    A(f"""
    v_and_b32 v2, 15, v1
    v_lshlrev_b32 v5, 6, v2
    v_lshl_add_u32 v5, v3, 4, v5
    s_lshl_b32 s{sT}, s{sW}, 8
    s_add_u32 s{sT}, s{sT}, {L_F}
    v_add_u32 v5, s{sT}, v5
    v_lshlrev_b32 v6, 2, v1
    v_add_u32 v6, {L_F}, v6
    s_mov_b32 exec_lo, 0x00030003
    s_mov_b32 exec_hi, 0x00030003
    ds_write_b128 v5, {v(DG,4)}
    ds_write_b128 v5, {v(DU,4)} offset:128
    s_mov_b64 exec, -1
    s_waitcnt lgkmcnt(0)
    s_barrier
    s_cmp_eq_u32 s{sW}, 0
    s_cbranch_scc0 L_act_done
    """)
    PG = 72
    for w in range(4):
        A(f"ds_read2_b32 {v(PG+2*w,2)}, v6 offset0:{64*w} offset1:{64*w+32}")
    A(f"""
    s_lshl_b32 s{sT}, s{sJ}, 7
    s_add_u32 s{sT}, s{sT}, {A_OFF}
    v_lshlrev_b32 v6, 1, v1
    s_waitcnt lgkmcnt(2)
    v_pk_add_f32 {v(PG,2)}, {v(PG,2)}, {v(PG+2,2)}
    s_waitcnt lgkmcnt(0)
    v_pk_add_f32 {v(PG+4,2)}, {v(PG+4,2)}, {v(PG+6,2)}
    v_pk_add_f32 {v(PG,2)}, {v(PG,2)}, {v(PG+4,2)}
    v_cvt_pk_bf16_f32 v{PG}, v{PG}, v{PG+1}
    v_and_b32 v{PG+1}, s{sMASK}, v{PG}
    v_lshlrev_b32 v{PG}, 16, v{PG}
    v_mul_f32 v{PG+2}, {-1.4426950408889634!r}, v{PG}
    v_exp_f32 v{PG+2}, v{PG+2}
    v_add_f32 v{PG+2}, 1.0, v{PG+2}
    v_rcp_f32 v{PG+2}, v{PG+2}
    v_mul_f32 v{PG}, v{PG}, v{PG+2}
    v_cvt_pk_bf16_f32 v{PG}, v{PG}, v{PG}
    v_lshlrev_b32 v{PG}, 16, v{PG}
    v_mul_f32 v{PG}, v{PG}, v{PG+1}
    v_mov_b32_dpp v{PG+1}, v{PG} quad_perm:[1,0,3,2] row_mask:0xf bank_mask:0xf
    v_cvt_pk_bf16_f32 v{PG}, v{PG}, v{PG+1}
    s_mov_b32 exec_lo, 0x55555555
    s_mov_b32 exec_hi, 0
    buffer_store_dword v{PG}, v6, s[{SWS}:{SWS+3}], s{sT} offen sc1
    s_mov_b64 exec, -1
    L_act_done:
    """)
    stamp(15)
    A(f"""
    s_cmp_lt_u32 s{sM}, 25
    s_cbranch_scc0 L_fin
    """)
    vTK, vLN, vHH, vSG, vOA = 80, 81, 82, 83, 84
    A(f"""
    s_cmp_eq_u32 s{sW}, 0
    s_cbranch_scc0 L_nofin
    v_bfe_u32 v2, v1, 4, 1
    v_cmp_eq_u32 vcc, 1, v2
    v_mov_b32 v5, s{sTA}
    v_mov_b32 v6, s{sTB}
    v_cndmask_b32 v{vTK}, v5, v6, vcc
    v_mov_b32 v5, s{sRA}
    v_mov_b32 v6, s{sRB}
    v_cndmask_b32 v8, v5, v6, vcc
    v_mov_b32 v5, s{sK1}
    v_mov_b32 v6, s{sK2}
    v_cndmask_b32 v{vSG}, v5, v6, vcc
    v_lshrrev_b32 v9, 3, v{vTK}
    v_lshlrev_b32 v9, 7, v9
    s_mov_b32 s{sT}, {D_OFF}
    s_mov_b32 s{sCNT}, 0
    L_dpoll:
    buffer_load_dword v10, v9, s[{SWS}:{SWS+3}], s{sT} offen sc1
    s_add_u32 s{sCNT}, s{sCNT}, 1
    s_cmp_gt_u32 s{sCNT}, {SPIN}
    s_cbranch_scc1 L_dpollx
    s_waitcnt vmcnt(0)
    v_cmp_ne_u32 vcc, 1, v10
    s_cbranch_vccnz L_dpoll
    L_dpollx:
    v_and_b32 v2, 15, v1
    s_lshl_b32 s{sT}, s{sJD}, 5
    v_lshl_add_u32 v2, v2, 1, s{sT}
    v_add_u32 v8, v8, v2
    s_mov_b32 s{sT}, {R_OFF}
    s_mov_b32 s{sT2}, {H_OFF}
    buffer_load_ushort v{vLN}, v8, s[{SWS}:{SWS+3}], s{sT} offen sc1
    buffer_load_ushort v{vHH}, v8, s[{SWS}:{SWS+3}], s{sT2} offen sc1
    v_mul_u32_u24 v{vOA}, 1280, v{vTK}
    v_add_u32 v{vOA}, v{vOA}, v2
    v_not_b32 v5, v{vSG}
    v_ashrrev_i32 v5, 31, v5
    v_or_b32 v5, 0x80000000, v5
    v_xor_b32 v{vSG}, v{vSG}, v5
    v_and_b32 v{vSG}, s{sMASK}, v{vSG}
    v_mul_f32 v{vSG}, {-1.4426950408889634!r}, v{vSG}
    v_exp_f32 v{vSG}, v{vSG}
    v_add_f32 v{vSG}, 1.0, v{vSG}
    v_rcp_f32 v{vSG}, v{vSG}
    v_cvt_pk_bf16_f32 v{vSG}, v{vSG}, v{vSG}
    v_lshlrev_b32 v{vSG}, 16, v{vSG}
    L_nofin:
    v_and_b32 v2, 1, v1
    v_lshlrev_b32 v7, 5, v2
    v_bfe_u32 v2, v1, 4, 1
    v_lshl_add_u32 v7, v2, 4, v7
    v_lshrrev_b32 v2, 5, v1
    v_lshl_add_u32 v7, v2, 7, v7
    s_mul_i32 s{sT3}, s{sW}, {24*128}
    s_add_u32 s{sT3}, s{sT3}, {A_OFF}
    s_mov_b32 s{sCNT}, 0
    L_apoll:
    """)
    AS = 96
    for i in range(12):
        A(f"buffer_load_dwordx4 {v(AS+4*i,4)}, v7, s[{SWS}:{SWS+3}], s{sT3} offen offset:{256*i} sc1")
    A(f"""
    s_add_u32 s{sCNT}, s{sCNT}, 1
    s_cmp_gt_u32 s{sCNT}, {SPIN}
    s_cbranch_scc1 L_apollx
    s_waitcnt vmcnt(0)
    v_max3_u32 v2, v{AS}, v{AS+1}, v{AS+2}
    """)
    for i in range(3, 47, 2): A(f"v_max3_u32 v2, v2, v{AS+i}, v{AS+i+1}")
    A(f"""
    v_max_u32 v2, v2, v{AS+47}
    v_cmp_eq_u32 vcc, -1, v2
    s_cbranch_vccnz L_apoll
    L_apollx:
    s_waitcnt vmcnt(0)
    """)
    stamp(16)
    for i in range(12):
        d = DG + 4*(i % 2)
        A(f"v_mfma_f32_16x16x32_bf16 {v(d,4)}, {a(AD+4*i,4)}, {v(AS+4*i,4)}, {v(d,4) if i > 1 else 0}")
    L_D = L_S + 1280
    A(f"""
    v_and_b32 v2, 15, v1
    v_lshrrev_b32 v3, 4, v1
    v_lshlrev_b32 v5, 6, v2
    v_lshl_add_u32 v5, v3, 4, v5
    s_lshl_b32 s{sT}, s{sW}, 7
    s_add_u32 s{sT}, s{sT}, {L_D}
    v_add_u32 v5, s{sT}, v5
    v_lshlrev_b32 v6, 2, v1
    v_add_u32 v6, {L_D}, v6
    v_pk_add_f32 {v(DG,2)}, {v(DG,2)}, {v(DU,2)}
    v_pk_add_f32 {v(DG+2,2)}, {v(DG+2,2)}, {v(DU+2,2)}
    s_mov_b32 exec_lo, 0x00030003
    s_mov_b32 exec_hi, 0x00030003
    ds_write_b128 v5, {v(DG,4)}
    s_mov_b64 exec, -1
    s_waitcnt lgkmcnt(0)
    s_barrier
    s_cmp_eq_u32 s{sW}, 0
    s_cbranch_scc0 L_fin
    ds_read2_b32 {v(PG,2)}, v6 offset0:0 offset1:32
    ds_read2_b32 {v(PG+2,2)}, v6 offset0:64 offset1:96
    v_lshlrev_b32 v{vLN}, 16, v{vLN}
    v_lshlrev_b32 v{vHH}, 16, v{vHH}
    s_waitcnt lgkmcnt(0)
    v_pk_add_f32 {v(PG,2)}, {v(PG,2)}, {v(PG+2,2)}
    v_add_f32 v{PG}, v{PG}, v{PG+1}
    """)
    rnd(PG)
    A(f"v_mul_f32 v{PG}, v{PG}, v{vSG}")
    rnd(PG)
    A(f"v_add_f32 v{PG}, v{PG}, v{vLN}")
    rnd(PG)
    A(f"""
    v_add_f32 v{PG}, v{PG}, v{vHH}
    v_mov_b32_dpp v{PG+1}, v{PG} quad_perm:[1,0,3,2] row_mask:0xf bank_mask:0xf
    v_cvt_pk_bf16_f32 v{PG}, v{PG}, v{PG+1}
    s_mov_b32 exec_lo, 0x55555555
    s_mov_b32 exec_hi, 0
    buffer_store_dword v{PG}, v{vOA}, s[{SOUT}:{SOUT+3}], 0 offen sc1
    s_mov_b64 exec, -1
    """)
    A("L_fin:")
    if STAMP:
        stamp(17)
        A(f"""
        s_lshl_b32 s{sT}, s2, 10
        s_lshl_b32 s{sT2}, s{sW}, 8
        s_add_u32 s{sT}, s{sT}, s{sT2}
        s_add_u32 s{sT}, s{sT}, {T_OFF}
        v_lshlrev_b32 v2, 2, v1
        buffer_store_dword v{VSTAMP}, v2, s[{SWS}:{SWS+3}], s{sT} offen
        """)
    if STAMP == 2:
        sel = [0, 0, 2, 3, 7, 8, 10, 11, 12, 13, 14, 15, 16, 17, 1, 6]
        A(f"v_mov_b32 v4, 0")
        for i, t in enumerate(sel):
            A(f"v_readlane_b32 s{sT}, v{VSTAMP}, {t}")
            if i == 0: A(f"s_not_b32 s{sT}, s{sT}")
            A(f"s_nop 3\nv_writelane_b32 v4, s{sT}, {i}")
        A(f"s_mov_b64 exec, 0xffff\nv_lshlrev_b32 v2, 2, v1\nbuffer_atomic_umax v4, v2, s[{SDBG}:{SDBG+3}], 0 offen sc1")
    A("L_end:\ns_endpgm")
    npad = A.pad()
    hdr = open(os.path.join(os.path.dirname(os.path.abspath(__file__)), 'header.txt')).read()
    out = hdr + f"; @launch grid=(256,1,1) block=(256,1,1) lds={LDS_SIZE}\n"
    out += f""".amdgcn_target "amdgcn-amd-amdhsa--gfx950"
.text
.globl {NAME}
.p2align 8
.type {NAME},@function
"""
    out += A.text()
    out += f""".section .rodata,"a"
.p2align 6
.amdhsa_kernel {NAME}
  .amdhsa_next_free_vgpr 512
  .amdhsa_next_free_sgpr 102
  .amdhsa_accum_offset 256
  .amdhsa_group_segment_fixed_size 0
  .amdhsa_kernarg_size 112
  .amdhsa_user_sgpr_count 2
  .amdhsa_user_sgpr_kernarg_segment_ptr 1
  .amdhsa_system_sgpr_workgroup_id_x 1
  .amdhsa_float_denorm_mode_32 3
.end_amdhsa_kernel
"""
    return out, npad

if __name__ == "__main__":
    opt = {}
    outp = None
    for arg in sys.argv[1:]:
        if '=' in arg:
            k, val = arg.split('='); opt[k] = int(val)
        else:
            outp = arg
    txt, npad = build(opt)
    open(outp or "sequential_preLN__ssm_conv_h3__moe_arch_mod__prompt.s", "w").write(txt)
    print("nops inserted:", npad, "lines:", txt.count("\n"))
```

```python
import sys, os
sys.path.insert(0, os.path.dirname(os.path.abspath(__file__)))
from asmlib import Asm

NAME = "sequential_preLN__ssm_conv_h3__moe_arch_mod__prompt_kernel"

U_OFF  = 0x000000
Y_OFF  = 0x280000
G_OFF  = 0x504000
R_OFF  = 0x510000
H_OFF  = 0x5B0000
A_OFF  = 0x650000
D_OFF  = 0x660000
F0_OFF = 0x670000
F1_OFF = 0x680000
E_OFF  = 0x690000
T_OFF  = 0x700000
WS_SIZE = 0x800000

KC_STRIDE = 4160
L_K  = 0
L_U  = 66560
UQ   = 1312
L_P0 = L_U + 4*5248
L_Y  = L_P0 + 16384
L_P2 = L_Y + 4*4352
L_S  = L_P2 + 10240
LDS_SIZE = L_S + 2048

SPIN = 40000

def v(i, n=1): return f"v{i}" if n == 1 else f"v[{i}:{i+n-1}]"
def a(i, n=1): return f"a{i}" if n == 1 else f"a[{i}:{i+n-1}]"
def s(i, n=1): return f"s{i}" if n == 1 else f"s[{i}:{i+n-1}]"

def build(opt):
    A = Asm()
    STAMP = opt.get('stamp', 0)
    EXACT = opt.get('exact', 1)
    nst = [0]
    def stamp(tag):
        if STAMP:
            k = nst[0]; nst[0] += 1
            A(f"s_memrealtime s[{STAMPTMP}:{STAMPTMP+1}]\ns_waitcnt lgkmcnt(0)\nv_writelane_b32 v{VSTAMP}, s{STAMPTMP}, {tag}")
    STAMPTMP = 98
    VSTAMP = 15

    SK, SV, SWS, SKR, SOUT, SDBG, SX = 36, 40, 44, 48, 52, 56, 60
    sW, sG, sM, sMASK, sT = 3, 4, 5, 6, 7
    sTAU, sCH, sDLO, sDHI, sCNT, sT2, sT3, sT4 = 64, 65, 66, 67, 68, 69, 70, 71
    sUO, sYO, sJ, sTB16 = 72, 73, 74, 75
    sE0 = 76
    sP0 = 78
    sP1 = 80
    sK1, sK2 = 82, 83
    sR0 = 84
    sPC = 88
    sTAG = 92

    def srd(base, ptr, nbytes):
        A(f"s_mov_b32 s{base}, s{ptr}\ns_mov_b32 s{base+1}, s{ptr+1}\ns_mov_b32 s{base+2}, {nbytes}\ns_mov_b32 s{base+3}, 0x00020000")

    A(f"{NAME}:")
    A(f"""
    s_cmp_ge_u32 s2, 256
    s_cbranch_scc1 L_end
    s_load_dwordx16 s[8:23], s[0:1], 0
    s_load_dwordx8 s[24:31], s[0:1], 64
    s_load_dwordx4 s[32:35], s[0:1], 96
    """)
    if STAMP:
        A(f"v_mov_b32 v{VSTAMP}, 0\ns_memrealtime s[{STAMPTMP}:{STAMPTMP+1}]")
    A(f"""
    s_getpc_b64 s[{sPC}:{sPC+1}]
    L_pc:
    s_mov_b32 s{sPC+2}, L_end-L_pc
    s_mov_b32 s{sPC+3}, 0x00020000
    s_and_b32 s{sG}, s2, 7
    s_lshr_b32 s{sM}, s2, 3
    s_and_b32 s{sT}, s{sM}, 7
    s_lshl_b32 s{sT}, s{sT}, 12
    v_lshlrev_b32 v2, 4, v0
    buffer_load_dword v3, v2, s[{sPC}:{sPC+3}], s{sT} offen
    v_and_b32 v1, 63, v0
    v_lshrrev_b32 v2, 6, v0
    s_mov_b32 s{sMASK}, 0xffff0000
    v_readfirstlane_b32 s{sW}, v2
    """)
    S1 = opt.get('s1', 1)
    KLATE = opt.get('klate', 0)
    sMP = sR0 + 1
    sCGP, sNT = sR0 + 2, sR0 + 3
    vCG, vRG = 4, 5
    vA0, vA2, vA3, vUA, vSH0, vOWN = 6, 7, 8, 14, 12, 13
    vB0, vB2, vB3 = 9, 10, 11
    A(f"""
    s_sub_u32 s{sMP}, s{sM}, 20
    s_sub_u32 s{sT}, s2, 160
    s_cmp_lt_u32 s2, 160
    s_cselect_b32 s{sT}, s2, s{sT}
    s_cselect_b32 s{sNT}, 1, 2
    s_mul_i32 s{sT2}, s{sT}, 6554
    s_lshr_b32 s{sT2}, s{sT2}, 16
    s_mul_i32 s{sT3}, s{sT2}, 10
    s_sub_u32 s{sCGP}, s{sT}, s{sT3}
    s_lshl_b32 s{sT3}, s{sT2}, 1
    s_add_u32 s{sT3}, s{sT3}, 16
    s_cmp_lt_u32 s2, 160
    s_cselect_b32 s{sT2}, s{sT2}, s{sT3}
    s_cmp_lt_u32 s2, 240
    s_cselect_b32 s{sNT}, s{sNT}, 0
    v_and_b32 v{vCG}, 7, v0
    v_lshrrev_b32 v{vRG}, 3, v0
    s_mul_i32 s{sT}, s{sT2}, {64*1280}
    s_lshl_b32 s{sT3}, s{sCGP}, 7
    s_add_u32 s{sT}, s{sT}, s{sT3}
    v_mul_u32_u24 v{vA0}, 2560, v{vRG}
    v_add_u32 v{vA0}, s{sT}, v{vA0}
    v_lshl_add_u32 v{vA0}, v{vCG}, 4, v{vA0}
    v_subrev_u32 v{vA2}, 2560, v{vA0}
    v_subrev_u32 v{vA3}, 3840, v{vA0}
    s_lshl_b32 s{sT3}, s{sCGP}, 9
    v_lshl_add_u32 v{vSH0}, v{vCG}, 6, s{sT3}
    v_lshlrev_b32 v{vUA}, 12, v{vRG}
    v_lshl_add_u32 v{vUA}, v{vCG}, 4, v{vUA}
    s_lshl_b32 s{sUO}, s{sCGP}, 18
    s_lshl_b32 s{sT}, s{sT2}, 7
    s_add_u32 s{sUO}, s{sUO}, s{sT}
    """)
    A(f"""
    s_add_u32 s{sT}, s{sM}, 12
    s_and_b32 s{sT}, s{sT}, 31
    s_lshr_b32 s{sTB16}, s{sT}, 1
    s_lshl_b32 s{sTB16}, s{sTB16}, 3
    s_add_u32 s{sTB16}, s{sTB16}, s{sG}
    s_and_b32 s{sT}, s{sT}, 1
    s_lshl_b32 s{sTAU}, s{sTB16}, 1
    s_add_u32 s{sTAU}, s{sTAU}, s{sT}
    s_mul_i32 s{sJ}, s{sG}, 6
    s_add_u32 s{sJ}, s{sJ}, s{sMP}
    s_waitcnt lgkmcnt(0)
    """)
    if STAMP: A(f"v_writelane_b32 v{VSTAMP}, s{STAMPTMP}, 0")
    A(f"s_mov_b32 s{sT}, {E_OFF}\ns_load_dword s{sTAG}, s[34:35], s{sT}")
    srd(SK, 10, 2621440); srd(SV, 12, 2621440); srd(SWS, 34, WS_SIZE)
    KV = 148
    SHR, SHC, ACC0 = 204, 220, 32
    PZ = 252
    def kx4(tile, r): return KV + 28*tile + 4*r
    def vx4(tile, t): return KV + 28*tile + 20 + 4*t
    def kv_loads(tile):
        so = "0" if tile == 0 else f"s{sT4}"
        A(f"""
        buffer_load_dwordx4 {v(vx4(tile,0),4)}, v{vA0}, s[{SV}:{SV+3}], {so} offen
        buffer_load_dwordx4 {v(vx4(tile,1),4)}, v{vA0}, s[{SV}:{SV+3}], {so} offen offset:1280
        buffer_load_dwordx4 {v(kx4(tile,3),4)}, v{vA0}, s[{SK}:{SK+3}], {so} offen
        buffer_load_dwordx4 {v(kx4(tile,4),4)}, v{vA0}, s[{SK}:{SK+3}], {so} offen offset:1280
        buffer_load_dwordx4 {v(kx4(tile,0),4)}, v{vA3}, s[{SK}:{SK+3}], {so} offen
        buffer_load_dwordx4 {v(kx4(tile,1),4)}, v{vA2}, s[{SK}:{SK+3}], {so} offen
        buffer_load_dwordx4 {v(kx4(tile,2),4)}, v{vA2}, s[{SK}:{SK+3}], {so} offen offset:1280
        """)
    def u_stores(regs, tile):
        for it in range(2):
            A(f"s_add_u32 s{sT}, s{sUO}, {it*32*4096 + tile*128}")
            A(f"buffer_store_dwordx4 {v(regs[it],4)}, v{vUA}, s[{SWS}:{SWS+3}], s{sT} offen sc1")
    def own_poison():
        A(f"""
        v_mov_b32 v{PZ}, -1
        v_mov_b32 v{PZ+1}, -1
        v_mov_b32 v{PZ+2}, -1
        v_mov_b32 v{PZ+3}, -1
        s_mul_i32 s{sT3}, s{sTAU}, 2560
        s_add_u32 s{sT3}, s{sT3}, {R_OFF}
        v_mov_b32 v{vOWN}, s{sT3}
        s_lshl_b32 s{sT}, s{sTAU}, 7
        s_add_u32 s{sT2}, s{sT}, {G_OFF} - 2560
        v_mov_b32 v2, s{sT2}
        v_cmp_eq_u32 vcc, 20, v{vRG}
        v_cndmask_b32 v{vOWN}, v{vOWN}, v2, vcc
        s_add_u32 s{sT2}, s{sT}, {D_OFF} - 2688
        v_mov_b32 v2, s{sT2}
        v_cmp_eq_u32 vcc, 21, v{vRG}
        v_cndmask_b32 v{vOWN}, v{vOWN}, v2, vcc
        s_lshl_b32 s{sT}, s{sJ}, 7
        s_add_u32 s{sT2}, s{sT}, {A_OFF} - 2816
        s_cmp_lt_u32 s{sMP}, 6
        s_cselect_b32 s{sT2}, s{sT2}, {WS_SIZE}
        v_mov_b32 v2, s{sT2}
        v_cmp_eq_u32 vcc, 22, v{vRG}
        v_cndmask_b32 v{vOWN}, v{vOWN}, v2, vcc
        v_mov_b32 v2, {WS_SIZE}
        v_cmp_lt_u32 vcc, 22, v{vRG}
        v_cndmask_b32 v{vOWN}, v{vOWN}, v2, vcc
        v_lshl_add_u32 v{vOWN}, v0, 4, v{vOWN}
        buffer_store_dwordx4 {v(PZ,4)}, v{vOWN}, s[{SWS}:{SWS+3}], 0 offen sc1
        """)
    def arrive(off):
        A(f"""
        s_lshl_b32 s{sT}, s2, 7
        s_add_u32 s{sT}, s{sT}, {off}
        s_cmp_eq_u32 s{sW}, 0
        s_cselect_b32 s{sT}, s{sT}, {WS_SIZE}
        v_mov_b32 v2, s{sTAG}
        s_mov_b64 exec, 1
        buffer_store_dword v2, off, s[{SWS}:{SWS+3}], s{sT} sc1
        s_mov_b64 exec, -1
        """)
    XR0, XS0, XR1, XS1, WR4, WR1 = 16, 20, 22, 21, 28, 26
    vXA, vXB = 27, 3
    def x_addr():
        A(f"s_waitcnt lgkmcnt(0)\ns_add_u32 s{sTAG}, s{sTAG}, 1")
        srd(SX, 8, 2621440); srd(SOUT, 30, 2621440)
        A(f"""
        s_lshl_b32 s{sT2}, s{sTAU}, 2
        s_add_u32 s{sT2}, s{sT2}, s{sW}
        s_mul_i32 s{sT2}, s{sT2}, 2560
        v_lshl_add_u32 v{vXA}, v1, 4, s{sT2}
        s_add_u32 s{sT2}, s{sT2}, 1024
        v_lshl_add_u32 v{vXB2}, v1, 2, s{sT2}
        """)
    vXB2 = 13
    def x_loads():
        A(f"""
        buffer_load_dwordx4 {v(XR0,4)}, v{vXA}, s[{SX}:{SX+3}], 0 offen
        buffer_load_dword v{XS0}, v{vXB2}, s[{SX}:{SX+3}], 0 offen
        buffer_load_dwordx4 {v(XR1,4)}, v{vXA}, s[{SX}:{SX+3}], 0 offen offset:1280
        buffer_load_dword v{XS1}, v{vXB2}, s[{SX}:{SX+3}], 0 offen offset:1280
        v_lshlrev_b32 v2, 4, v1
        global_load_dwordx4 {v(WR4,4)}, v2, s[22:23]
        v_lshlrev_b32 v2, 2, v1
        global_load_dword v{WR1}, v2, s[22:23] offset:1024
        """)
    vXB = vXB2
    KL = 76
    def k_loads():
        A(f"""
        v_lshlrev_b32 v2, 4, v1
        v_subrev_u32 v{vB0}, 64, v2
        v_subrev_u32 v{vB2}, 48, v2
        v_add_u32 v{vB3}, 960, v2
        buffer_load_dwordx4 {v(KL,4)}, v{vB0}, s[{SKR}:{SKR+3}], 0 offen
        buffer_load_dwordx2 {v(KL+4,2)}, v{vB2}, s[{SKR}:{SKR+3}], 0 offen
        """)
        for it in range(1, 5):
            A(f"buffer_load_dwordx4 {v(KL+6*it,4)}, v{vB3}, s[{SKR}:{SKR+3}], 0 offen offset:{1024*(it-1)}")
            A(f"buffer_load_dwordx2 {v(KL+6*it+4,2)}, v{vB3}, s[{SKR}:{SKR+3}], 0 offen offset:{1024*(it-1)+16}")
    def shift_consts():
        for c in range(8):
            for h in range(2):
                r = SHR + 2*c + h
                d = SHC + 4*c + 2*h
                if c % 2 == 0:
                    A(f"v_and_b32 v{d}, 0xffff, v{r}\nv_lshrrev_b32 v{d+1}, 16, v{r}")
                else:
                    A(f"v_lshlrev_b32 v{d}, 16, v{r}\nv_and_b32 v{d+1}, s{sMASK}, v{r}")
    vL0, vR0, vR1 = 6, 7, 8
    def p0_addr():
        A(f"""
        v_xor_b32 v2, 3, v{vRG}
        v_lshrrev_b32 v3, 2, v{vRG}
        v_xor_b32 v3, v3, v{vCG}
        v_and_b32 v2, 3, v2
        v_lshlrev_b32 v2, 2, v2
        v_lshl_add_u32 v2, v3, 4, v2
        v_add_u32 v2, {L_P0}, v2
        v_lshl_add_u32 v{vL0}, v{vCG}, 10, v2
        v_xor_b32 v3, s{sW}, v{vCG}
        v_lshlrev_b32 v2, 7, v{vRG}
        v_add_u32 v2, {L_P0}, v2
        v_lshl_add_u32 v{vR0}, v3, 4, v2
        v_xor_b32 v3, 4, v3
        v_lshl_add_u32 v{vR1}, v3, 4, v2
        """)
    def p0_compute(tile):
        TMP = 52
        for p0 in ((0, 1), (2, 3)):
            accs = []
            for p in p0:
                for b in range(2):
                    for t in range(2):
                        accs.append((p, b, t, ACC0 + 4*p + 2*b + t))
            for tap in range(4):
                for (p, b, t, acc) in accs:
                    kr = kx4(tile, 3 + t - tap) + p
                    w = SHC + 4*(2*p + b) + tap
                    if tap == 0: A(f"v_dot2_f32_bf16 v{acc}, v{kr}, v{w}, 0")
                    else: A(f"v_dot2c_f32_bf16 v{acc}, v{kr}, v{w}")
            for (p, b, t, acc) in accs:
                tr = TMP + (acc - ACC0) % 8
                if b == 0: A(f"v_lshlrev_b32 v{tr}, 16, v{vx4(tile,t)+p}")
                else: A(f"v_and_b32 v{tr}, s{sMASK}, v{vx4(tile,t)+p}")
            for (p, b, t, acc) in accs:
                tr = TMP + (acc - ACC0) % 8
                A(f"v_mul_f32 v{acc}, v{acc}, v{tr}")
            for p in p0:
                for b in range(2):
                    acc = ACC0 + 4*p + 2*b
                    A(f"v_cvt_pk_bf16_f32 v{acc}, v{acc+1}, v{acc}")
                    A(f"ds_write_b32 v{vL0}, v{acc} offset:{(2*p+b)*128 + 8192*tile}")
    RB = 60
    def p0_readback(tile):
        A(f"ds_read_b128 {v(RB+8*tile,4)}, v{vR0} offset:{8192*tile}")
        A(f"ds_read_b128 {v(RB+8*tile+4,4)}, v{vR1} offset:{8192*tile + 32*128}")
    def shift_loads():
        for i in range(4):
            A(f"global_load_dwordx4 {v(SHR+4*i,4)}, v{vSH0}, s[14:15] offset:{16*i}")

    A(f"s_cmp_lg_u32 s{sNT}, 1\ns_cbranch_scc1 L_nc_start")
    shift_loads()
    kv_loads(0)
    if STAMP == 2: srd(SDBG, 32, 256)
    own_poison()
    NP = 1
    if S1 == 1:
        u_stores([PZ, PZ], 0); NP = 3
    A(f"""
    s_lshl_b32 s{sCH}, s2, 2
    s_add_u32 s{sCH}, s{sCH}, s{sW}
    s_lshl_b32 s{sT}, s{sCH}, 12
    s_add_u32 s{SKR}, s16, s{sT}
    s_addc_u32 s{SKR+1}, s17, 0
    s_mov_b32 s{SKR+2}, 4096
    s_mov_b32 s{SKR+3}, 0x00020000
    s_lshr_b32 s{sT}, s{sCH}, 1
    s_lshl_b32 s{sT}, s{sT}, 2
    s_load_dword s{sDLO}, s[18:19], s{sT}
    """)
    NK = 0
    if not KLATE:
        k_loads(); NK = 10
    A(f"s_waitcnt vmcnt({7+NP+NK})")
    shift_consts()
    p0_addr()
    x_addr()
    A(f"s_waitcnt vmcnt({NP+NK})")
    stamp(2)
    if KLATE: k_loads()
    p0_compute(0)
    A(f"s_waitcnt {'vmcnt(10) ' if S1 == 1 else ''}lgkmcnt(0)\ns_barrier")
    p0_readback(0)
    if S1 == 1: arrive(F0_OFF)
    A("s_waitcnt lgkmcnt(0)")
    u_stores([RB, RB+4], 0)
    stamp(3)

    vKL, vAW, vUW, vBR, vUE, vYW, vYR, vYG = 4, 5, 6, 7, 8, 9, 10, 11
    KT = 112
    A(f"""
    s_mul_i32 s{sT}, s{sW}, {4*KC_STRIDE}
    v_lshl_add_u32 v{vKL}, v1, 4, s{sT}
    s_waitcnt vmcnt({(1 if S1 < 2 else 0)+2})
    """)
    for it in range(5):
        w = KL + 6*it
        t = KT + 12*(it % 2)
        if it == 4: A("s_mov_b64 exec, 15")
        for k in range(4): A(f"v_alignbit_b32 v{t+k}, v{w+k+1}, v{w+k}, 16")
        A(f"ds_write_b128 v{vKL}, {v(t,4)} offset:{0*KC_STRIDE + 1024*it}")
        A(f"v_pk_mov_b32 {v(t+4,2)}, {v(w,2)}, {v(w+2,2)} op_sel:[1,0]")
        A(f"v_pk_mov_b32 {v(t+6,2)}, {v(w+2,2)}, {v(w+4,2)} op_sel:[1,0]")
        A(f"ds_write_b128 v{vKL}, {v(t+4,4)} offset:{1*KC_STRIDE + 1024*it}")
        for k in range(4): A(f"v_alignbit_b32 v{t+8+k}, v{w+k+2}, v{w+k+1}, 16")
        A(f"ds_write_b128 v{vKL}, {v(t+8,4)} offset:{2*KC_STRIDE + 1024*it}")
        A(f"ds_write_b128 v{vKL}, {v(w+2,4)} offset:{3*KC_STRIDE + 1024*it}")
    A("s_mov_b64 exec, -1")
    A(f"""
    v_and_b32 v2, 3, v1
    v_mul_u32_u24 v{vAW}, {KC_STRIDE}, v2
    v_lshrrev_b32 v3, 2, v1
    v_lshl_add_u32 v{vAW}, v3, 4, v{vAW}
    v_add_u32 v{vAW}, s{sT}, v{vAW}
    s_mul_i32 s{sT2}, s{sW}, {4*UQ}
    s_add_u32 s{sT2}, s{sT2}, {L_U}
    v_mul_u32_u24 v{vUW}, {UQ}, v2
    v_lshl_add_u32 v{vUW}, v3, 4, v{vUW}
    v_add_u32 v{vUW}, s{sT2}, v{vUW}
    v_and_b32 v2, 15, v1
    v_lshrrev_b32 v3, 4, v1
    v_sub_u32 v{vBR}, v2, v3
    v_lshl_add_u32 v{vBR}, v{vBR}, 4, s{sT2}
    v_add_u32 v{vBR}, 64, v{vBR}
    v_mul_u32_u24 v{vUE}, {UQ}, v3
    v_lshl_add_u32 v{vUE}, v2, 4, v{vUE}
    v_add_u32 v{vUE}, s{sT2}, v{vUE}
    v_mov_b32 v{KT}, 0
    v_mov_b32 v{KT+1}, 0
    v_mov_b32 v{KT+2}, 0
    v_mov_b32 v{KT+3}, 0
    ds_write_b128 v{vUE}, {v(KT,4)}
    v_mul_u32_u24 v{vYW}, 272, v2
    v_lshl_add_u32 v{vYW}, v3, 6, v{vYW}
    s_lshl_b32 s{sT}, s{sW}, 4
    s_add_u32 s{sT}, s{sT}, {L_Y}
    v_add_u32 v{vYW}, s{sT}, v{vYW}
    v_lshrrev_b32 v2, 4, v0
    v_mul_u32_u24 v{vYR}, 272, v2
    v_and_b32 v3, 15, v0
    v_lshl_add_u32 v{vYR}, v3, 4, v{vYR}
    v_add_u32 v{vYR}, {L_Y}, v{vYR}
    v_lshrrev_b32 v2, 3, v0
    v_mul_u32_u24 v{vYG}, 20480, v2
    v_and_b32 v3, 7, v0
    v_lshl_add_u32 v{vYG}, v3, 4, v{vYG}
    s_lshl_b32 s{sYO}, s2, 7
    s_add_u32 s{sYO}, s{sYO}, {Y_OFF}
    s_waitcnt lgkmcnt(0)
    s_bitcmp1_b32 s{sCH}, 0
    s_cselect_b32 s{sT}, 16, 0
    s_lshr_b32 s{sDLO}, s{sDLO}, s{sT}
    s_and_b32 s{sDLO}, s{sDLO}, 0xffff
    s_lshl_b32 s{sDHI}, s{sDLO}, 16
    """)
    stamp(4)
    if S1 == 2:
        A("s_waitcnt vmcnt(0)\ns_barrier")
        arrive(F0_OFF)
    A(f"""
    s_lshr_b32 s{sT}, s2, 4
    s_lshl_b32 s{sT}, s{sT}, 7
    s_add_u32 s{sT}, s{sT}, {F0_OFF}
    v_min_u32 v12, 23, v1
    v_mul_u32_u24 v12, 1280, v12
    """)
    WV = 112
    def wreg(g, off, n):
        return a(18*g + off, n) if g < 14 else v(WV + 18*(g-14) + off, n)
    order = []
    for st in range(4): order += [15-st, 11-st, 7-st, 3-st]
    for gi, g in enumerate(order):
        if gi == opt.get('b0at', 8): A(f"buffer_load_dword v2, v12, s[{SWS}:{SWS+3}], s{sT} offen sc1")
        for x in range(4):
            A(f"ds_read_b128 {wreg(g,4*x,4)}, v{vAW} offset:{256*g + 16*x}")
        A(f"ds_read_b64 {wreg(g,16,2)}, v{vAW} offset:{256*g + 64}")
    stamp(5)
    A(f"""
    s_mov_b32 s{sCNT}, 0
    s_waitcnt vmcnt(0)
    v_cmp_ne_u32 vcc, s{sTAG}, v2
    s_cbranch_vccz L_b0x
    L_b0:
    buffer_load_dword v2, v12, s[{SWS}:{SWS+3}], s{sT} offen sc1
    s_add_u32 s{sCNT}, s{sCNT}, 1
    s_cmp_gt_u32 s{sCNT}, {SPIN}
    s_cbranch_scc1 L_b0x
    s_waitcnt vmcnt(0)
    v_cmp_ne_u32 vcc, s{sTAG}, v2
    s_cbranch_vccnz L_b0
    L_b0x:
    s_lshl_b32 s{sT}, s{sCH}, 12
    v_lshlrev_b32 v3, 4, v1
    s_mov_b32 s{sCNT}, 0
    """)
    stamp(6)
    UL = 148
    A("L_upoll:")
    for it in range(4):
        A(f"buffer_load_dwordx4 {v(UL+4*it,4)}, v3, s[{SWS}:{SWS+3}], s{sT} offen offset:{1024*it} sc1")
    A(f"""
    s_add_u32 s{sCNT}, s{sCNT}, 1
    s_cmp_gt_u32 s{sCNT}, {SPIN}
    s_cbranch_scc1 L_upollx
    s_waitcnt vmcnt(3)
    v_max3_u32 v2, v{UL}, v{UL+1}, v{UL+2}
    s_waitcnt vmcnt(2)
    v_max3_u32 v2, v2, v{UL+3}, v{UL+4}
    v_max3_u32 v2, v2, v{UL+5}, v{UL+6}
    s_waitcnt vmcnt(1)
    v_max3_u32 v2, v2, v{UL+7}, v{UL+8}
    v_max3_u32 v2, v2, v{UL+9}, v{UL+10}
    s_waitcnt vmcnt(0)
    v_max3_u32 v2, v2, v{UL+11}, v{UL+12}
    v_max3_u32 v2, v2, v{UL+13}, v{UL+14}
    v_max_u32 v2, v2, v{UL+15}
    v_cmp_eq_u32 vcc, -1, v2
    s_cbranch_vccnz L_upoll
    L_upollx:
    s_waitcnt vmcnt(0)
    """)
    stamp(7)
    for it in range(4):
        A(f"ds_write_b128 v{vUW}, {v(UL+4*it,4)} offset:{256 + 256*it}")
    for nt in range(4):
        A(f"s_add_u32 s{sT}, s{sYO}, {32*20480*nt}")
        A(f"buffer_store_dwordx4 {v(PZ,4)}, v{vYG}, s[{SWS}:{SWS+3}], s{sT} offen sc1")
    x_loads()
    A("s_waitcnt lgkmcnt(0)")
    ACC, BB = 32, 64
    def breg(st, q): return BB + 16*(st % 3) + 4*q
    def bload(st):
        return [f"ds_read_b128 {v(breg(st,q),4)}, v{vBR} offset:{q*UQ + 64*st}" for q in range(4)]
    for st in (0, 1):
        for l in bload(st): A(l)
    lds_issued = [('B', 0)]*4 + [('B', 1)]*4
    def lds(tag, text):
        A(text); lds_issued.append(tag)
    def wait_for(tag):
        idx = max(i for i, t in enumerate(lds_issued) if t == tag)
        n = len(lds_issued) - 1 - idx
        A(f"s_waitcnt lgkmcnt({min(n,15)})")
    EU, EY = 148, 152
    def epi_ops(nt):
        ops = []
        eu = EU + 8*(nt % 2); ey = EY + 8*(nt % 2)
        ops.append(('gap', 2, None))
        ops.append(('wait', ('U', nt), None))
        for x in range(8):
            j = 7 - x
            acc = ACC + 8*nt + x
            ops.append(('v', None, f"v_dot2c_f32_bf16 v{acc}, s{sDHI if (j & 1) else sDLO}, v{eu + (j >> 1)}"))
        for b in range(4):
            acc = ACC + 8*nt + 2*b
            ops.append(('v', None, f"v_cvt_pk_bf16_f32 v{ey+b}, v{acc}, v{acc+1}"))
        ops.append(('lds', ('W', nt), f"ds_write_b128 v{vYW}, {v(ey,4)} offset:{4352*nt}"))
        ops.append(('gap', 6, None))
        if nt == 0: ops.append(('x', None, "s_waitcnt vmcnt(6)"))
        ops.append(('wait', ('W', nt), None))
        ops.append(('x', None, "s_barrier"))
        ops.append(('lds', ('R', nt), f"ds_read_b128 {v(eu,4)}, v{vYR} offset:{4352*nt}"))
        if nt == 0: ops.append(('arr', None, None))
        ops.append(('x', None, f"s_add_u32 s{sT}, s{sYO}, {32*20480*nt}"))
        ops.append(('gap', 6, None))
        ops.append(('wait', ('R', nt), None))
        ops.append(('x', None, f"buffer_store_dwordx4 {v(eu,4)}, v{vYG}, s[{SWS}:{SWS+3}], s{sT} offen sc1"))
        return ops
    def emit_op(o):
        kind, tag, text = o
        if kind == 'lds': lds(tag, text)
        elif kind == 'wait': wait_for(tag)
        elif kind == 'arr': arrive(F1_OFF)
        elif kind == 'gap': pass
        else: A(text)
    pending = []
    started = set()
    gap = 0
    for st in range(16):
        e = st - 3
        wait_for(('B', st))
        mf = []
        for q in range(4):
            for nt in range(3, -1, -1):
                g = 4*nt - e
                if g < 0 or g > 4*nt + 3: continue
                for mt in range(2):
                    acc = ACC + 8*nt + 4*mt
                    c = v(acc, 4) if (nt, mt) in started else "0"
                    started.add((nt, mt))
                    mf.append(f"v_mfma_f32_16x16x32_bf16 {v(acc,4)}, {wreg(g, 12-4*q+2*mt, 4)}, {v(breg(st,q),4)}, {c}")
        extra = [(('B', st + 2), l) for l in (bload(st + 2) if st + 2 < 16 else [])]
        if st % 4 == 3:
            nt = st // 4
            extra.append((('U', nt), f"ds_read_b128 {v(EU + 8*(nt % 2),4)}, v{vUE} offset:{256 + 256*nt}"))
        for i, m in enumerate(mf):
            A(m)
            k = 0
            if extra and (i % 2 == 1 or len(extra) >= len(mf) - i):
                lds(*extra.pop(0)); k = 1
            if gap > 0: gap -= 1
            while pending and k < 2 and gap == 0:
                o = pending.pop(0)
                if o[0] == 'gap': gap = o[1]; break
                emit_op(o)
                if o[0] in ('v', 'lds'): k += 1
        if st % 4 == 3:
            while pending: emit_op(pending.pop(0))
            pending = epi_ops(st // 4); gap = 0
    while pending: emit_op(pending.pop(0))
    stamp(8)
    A("s_branch L_p2")

    A("L_nc_start:")
    sJD = sR0
    if STAMP == 2: srd(SDBG, 32, 256)
    A(f"s_cmp_eq_u32 s{sNT}, 0\ns_cbranch_scc1 L_nc_nop0")
    shift_loads()
    kv_loads(0)
    A(f"s_mov_b32 s{sT4}, {64*1280}")
    kv_loads(1)
    own_poison()
    NP = 1
    if S1 == 1:
        u_stores([PZ, PZ], 0); u_stores([PZ, PZ], 1); NP = 5
    A(f"s_waitcnt vmcnt({14+NP})")
    shift_consts()
    p0_addr()
    x_addr()
    A(f"s_waitcnt vmcnt({7+NP})")
    p0_compute(0)
    A(f"s_waitcnt vmcnt({NP})")
    stamp(2)
    p0_compute(1)
    A(f"s_waitcnt {'vmcnt(0) ' if S1 == 1 else ''}lgkmcnt(0)\ns_barrier")
    p0_readback(0); p0_readback(1)
    if S1 == 1: arrive(F0_OFF)
    A("s_waitcnt lgkmcnt(2)")
    u_stores([RB, RB+4], 0)
    A("s_waitcnt lgkmcnt(0)")
    u_stores([RB+8, RB+12], 1)
    stamp(3)
    if S1 == 2:
        A("s_waitcnt vmcnt(0)\ns_barrier")
        arrive(F0_OFF)
    A("s_branch L_nc_w\nL_nc_nop0:")
    own_poison()
    x_addr()
    A("s_waitcnt vmcnt(0)\ns_barrier")
    arrive(F1_OFF)
    A("L_nc_w:")
    x_loads()
    FL = 96
    AG, AU, AD = 0, 40, 0
    A(f"""
    s_mul_i32 s{sJD}, s{sG}, 5
    s_add_u32 s{sJD}, s{sJD}, s{sMP}
    s_sub_u32 s{sJD}, s{sJD}, 6
    s_mul_i32 s{sT4}, s{sW}, 20480
    v_lshl_add_u32 v6, v1, 4, s{sT4}
    s_cmp_lt_u32 s{sMP}, 6
    s_cbranch_scc0 L_prep_down
    """)
    A(f"""
    v_lshrrev_b32 v2, 2, v1
    v_and_b32 v3, 3, v1
    s_mul_i32 s{sT}, s{sW}, {160*3072}
    s_lshl_b32 s{sT2}, s{sJ}, 6
    s_add_u32 s{sT}, s{sT}, s{sT2}
    v_mul_u32_u24 v4, 3072, v2
    v_lshl_add_u32 v4, v3, 4, v4
    v_add_u32 v4, s{sT}, v4
    """)
    for i in range(10):
        A(f"global_load_dwordx4 {v(FL+4*i,4)}, v4, s[24:25]")
        A(f"global_load_dwordx4 {v(FL+40+4*i,4)}, v4, s[26:27]")
        if i < 9: A(f"v_add_u32 v4, {16*3072}, v4")
    A(f"""
    v_lshrrev_b32 v2, 4, v1
    v_bfe_u32 v3, v1, 2, 2
    v_lshlrev_b32 v5, 9, v2
    v_lshl_add_u32 v5, v3, 6, v5
    v_and_b32 v3, 3, v1
    v_lshl_add_u32 v5, v3, 3, v5
    v_add_u32 v5, s{sT4}, v5
    """)
    for i in range(20):
        A(f"s_waitcnt vmcnt({19-i if i % 2 == 0 else 19-i})")
        r = FL + 4*(i//2) + (40 if i % 2 else 0)
        A(f"ds_write_b128 v6, {v(r,4)} offset:{1024*(i//2) + (10240 if i % 2 else 0)}")
    A("s_waitcnt lgkmcnt(0)")
    for mat in range(2):
        for i in range(5):
            for ct in range(2):
                r = (AG, AU)[mat] + 8*i + 4*ct
                o = 10240*mat + 2048*i + 32*ct
                A(f"ds_read_b64_tr_b16 {a(r,2)}, v5 offset:{o}")
                A(f"ds_read_b64_tr_b16 {a(r+2,2)}, v5 offset:{o+256}")
    A("s_waitcnt lgkmcnt(0)\ns_branch L_prep_done")
    A(f"""
    L_prep_down:
    s_cmp_lt_u32 s{sMP}, 11
    s_cbranch_scc0 L_prep_done
    v_lshrrev_b32 v2, 1, v1
    v_and_b32 v3, 1, v1
    s_mul_i32 s{sT}, s{sW}, {384*1280}
    s_lshl_b32 s{sT2}, s{sJD}, 5
    s_add_u32 s{sT}, s{sT}, s{sT2}
    v_mul_u32_u24 v4, 1280, v2
    v_lshl_add_u32 v4, v3, 4, v4
    v_add_u32 v4, s{sT}, v4
    """)
    for i in range(12):
        A(f"global_load_dwordx4 {v(FL+4*i,4)}, v4, s[28:29]")
        if i < 11: A(f"v_add_u32 v4, {32*1280}, v4")
    A(f"""
    v_lshrrev_b32 v2, 4, v1
    v_bfe_u32 v3, v1, 2, 2
    v_lshlrev_b32 v5, 8, v2
    v_lshl_add_u32 v5, v3, 5, v5
    v_and_b32 v3, 3, v1
    v_lshl_add_u32 v5, v3, 3, v5
    v_add_u32 v5, s{sT4}, v5
    """)
    for i in range(12):
        A(f"s_waitcnt vmcnt({11-i})")
        A(f"ds_write_b128 v6, {v(FL+4*i,4)} offset:{1024*i}")
    A("s_waitcnt lgkmcnt(0)")
    for i in range(12):
        A(f"ds_read_b64_tr_b16 {a(AD+4*i,2)}, v5 offset:{1024*i}")
        A(f"ds_read_b64_tr_b16 {a(AD+4*i+2,2)}, v5 offset:{1024*i+128}")
    A("s_waitcnt lgkmcnt(0)")
    A("L_prep_done:\ns_waitcnt vmcnt(0)")
    stamp(8)

    A("L_p2:")
    XF, LF = 32, 52
    DF = 72
    def xraw(t, p): return (XR0, XR1)[t] + p if p < 4 else (XS0, XS1)[t]
    Z, Z1, ZE = 2, 3, 12
    def unpack(dst, src):
        A(f"v_lshlrev_b32 v{dst}, 16, v{src}\nv_and_b32 v{dst+1}, s{sMASK}, v{src}")
    def reduce2(a0, a1, fill=None):
        fill = list(fill or [])
        def F(n):
            for _ in range(n):
                if fill: A(fill.pop(0))
        A(f"v_add_f32 v{Z}, v{a0}, v{a0+1}\nv_add_f32 v{Z1}, v{a1}, v{a1+1}")
        F(2)
        A(f"v_permlane32_swap_b32 v{Z}, v{Z1}")
        A(f"v_add_f32 v{Z}, v{Z}, v{Z1}")
        for m in ("quad_perm:[1,0,3,2]", "quad_perm:[2,3,0,1]", "row_half_mirror", "row_mirror"):
            F(2)
            A(f"v_add_f32_dpp v{Z}, v{Z}, v{Z} {m} row_mask:0xf bank_mask:0xf")
        F(2)
        A(f"v_add_f32_dpp v{Z}, v{Z}, v{Z} row_bcast:15 row_mask:0xa bank_mask:0xf")
        return fill
    def rnd(r):
        A(f"v_cvt_pk_bf16_f32 v{r}, v{r}, v{r}\nv_lshlrev_b32 v{r}, 16, v{r}")
    def stats(src, dst, S0):
        for t in range(2):
            A(f"v_pk_add_f32 {v(S0+2*t,2)}, {v(src+10*t,2)}, {v(src+10*t+2,2)}")
        for p in range(2, 5):
            for t in range(2):
                A(f"v_pk_add_f32 {v(S0+2*t,2)}, {v(S0+2*t,2)}, {v(src+10*t+2*p,2)}")
        reduce2(S0, S0+2)
        A(f"""
        v_mul_f32 v{Z}, {1.0/640!r}, v{Z}
        v_cvt_pk_bf16_f32 v{Z1}, v{Z}, v{Z}
        v_lshlrev_b32 v{Z1}, 16, v{Z1}
        v_sub_f32 v{ZE}, v{Z}, v{Z1}
        v_readlane_b32 s{sP0}, v{Z1}, 16
        v_readlane_b32 s{sP1}, v{Z1}, 48
        """)
        for p in range(5):
            for t in range(2):
                sp = (sP0, sP1)[t]
                A(f"v_pk_add_f32 {v(dst+10*t+2*p,2)}, {v(src+10*t+2*p,2)}, s[{sp}:{sp+1}] op_sel_hi:[1,0] neg_lo:[0,1] neg_hi:[0,1]")
        for p in range(5):
            for t in range(2):
                d = v(dst+10*t+2*p, 2)
                if p == 0: A(f"v_pk_mul_f32 {v(S0+2*t,2)}, {d}, {d}")
                else: A(f"v_pk_fma_f32 {v(S0+2*t,2)}, {d}, {d}, {v(S0+2*t,2)}")
        fill = []
        if EXACT:
            for p in range(5):
                for t in range(2):
                    d = dst+10*t+2*p
                    fill += [f"v_cvt_pk_bf16_f32 v{d}, v{d}, v{d+1}", f"v_and_b32 v{d+1}, s{sMASK}, v{d}", f"v_lshlrev_b32 v{d}, 16, v{d}"]
        fill = reduce2(S0, S0+2, fill)
        A(f"""
        v_mul_f32 v{Z}, {1.0/640!r}, v{Z}
        v_fma_f32 v{Z}, -v{ZE}, v{ZE}, v{Z}
        """)
        rnd(Z)
        A(f"v_add_f32 v{Z}, {1e-5!r}, v{Z}")
        rnd(Z)
        A(f"v_sqrt_f32 v{Z}, v{Z}")
        for _ in range(min(2, len(fill))): A(fill.pop(0))
        rnd(Z)
        A(f"v_rcp_f32 v{Z}, v{Z}")
        for f in fill: A(f)
        A(f"v_readlane_b32 s{sP0}, v{Z}, 16\nv_readlane_b32 s{sP1}, v{Z}, 48")
        for p in range(5):
            for t in range(2):
                sp = (sP0, sP1)[t]
                A(f"v_pk_mul_f32 {v(dst+10*t+2*p,2)}, {v(dst+10*t+2*p,2)}, s[{sp}:{sp+1}] op_sel_hi:[1,0]")
    vB1, vB1A = 10, 11
    A(f"""
    v_subrev_u32 v{vB1A}, 160, v0
    v_cmp_gt_u32 vcc, 80, v{vB1A}
    v_cndmask_b32 v{vB1A}, v0, v1, vcc
    v_lshlrev_b32 v{vB1A}, 7, v{vB1A}
    s_mov_b32 s{sT4}, {F1_OFF}
    buffer_load_dword v{vB1}, v{vB1A}, s[{SWS}:{SWS+3}], s{sT4} offen sc1
    """)
    A("s_waitcnt vmcnt(6)")
    for t in range(2):
        for p in range(5): unpack(XF+10*t+2*p, xraw(t, p))
    stats(XF, LF, 92)
    for t in range(2):
        for p in range(5):
            d = LF+10*t+2*p
            A(f"v_cvt_pk_bf16_f32 v{d}, v{d}, v{d+1}\nv_and_b32 v{d+1}, s{sMASK}, v{d}\nv_lshlrev_b32 v{d}, 16, v{d}")
    vYA, vPW, vPR, vPS = 4, 5, 6, 7
    YL = 96
    A(f"""
    v_lshrrev_b32 v{vYA}, 2, v0
    v_and_b32 v3, 3, v0
    v_lshlrev_b32 v{vYA}, 7, v{vYA}
    v_lshl_add_u32 v{vYA}, v3, 4, v{vYA}
    s_mul_i32 s{sYO}, s{sTB16}, 20480
    s_and_b32 s{sT}, s{sTAU}, 1
    s_lshl_b32 s{sT}, s{sT}, 6
    s_add_u32 s{sYO}, s{sYO}, s{sT}
    s_add_u32 s{sYO}, s{sYO}, {Y_OFF}
    s_add_u32 s{sT2}, s{sYO}, 8192
    s_add_u32 s{sT3}, s{sYO}, 16384
    s_cmp_lt_u32 s{sW}, 2
    s_cselect_b32 s{sT3}, s{sT3}, {WS_SIZE}
    v_lshlrev_b32 v{vPW}, 2, v0
    v_add_u32 v{vPW}, {L_P2}, v{vPW}
    s_mul_i32 s{sT}, s{sW}, 2560
    s_add_u32 s{sT}, s{sT}, {L_P2}
    v_lshl_add_u32 v{vPR}, v1, 5, s{sT}
    s_add_u32 s{sT}, s{sT}, 2048
    v_lshl_add_u32 v{vPS}, v1, 3, s{sT}
    s_mov_b32 s{sCNT}, 0
    """)
    stamp(9)
    A(f"""
    s_waitcnt vmcnt(0)
    v_cmp_ne_u32 vcc, s{sTAG}, v{vB1}
    s_cbranch_vccz L_b1x
    L_b1:
    s_sleep 8
    s_mov_b64 exec, vcc
    buffer_load_dword v{vB1}, v{vB1A}, s[{SWS}:{SWS+3}], s{sT4} offen sc1
    s_add_u32 s{sCNT}, s{sCNT}, 1
    s_cmp_gt_u32 s{sCNT}, {SPIN}
    s_cbranch_scc1 L_b1x
    s_waitcnt vmcnt(0)
    v_cmp_ne_u32 vcc, s{sTAG}, v{vB1}
    s_cbranch_vccnz L_b1
    L_b1x:
    s_mov_b64 exec, -1
    s_barrier
    s_cmp_lt_u32 s{sM}, 20
    s_cbranch_scc1 L_ypoll
    L_yprobe:
    s_mov_b64 exec, 1
    buffer_load_dword v{YL}, v{vYA}, s[{SWS}:{SWS+3}], s{sYO} offen sc1
    s_add_u32 s{sCNT}, s{sCNT}, 1
    s_cmp_gt_u32 s{sCNT}, {SPIN}
    s_waitcnt vmcnt(0)
    v_cmp_eq_u32 vcc, -1, v{YL}
    s_mov_b64 exec, -1
    s_cbranch_scc1 L_ypoll
    s_cbranch_vccz L_ypoll
    s_sleep 6
    s_branch L_yprobe
    L_ypoll:
    buffer_load_dwordx4 {v(YL,4)}, v{vYA}, s[{SWS}:{SWS+3}], s{sYO} offen sc1
    buffer_load_dwordx4 {v(YL+4,4)}, v{vYA}, s[{SWS}:{SWS+3}], s{sT2} offen sc1
    buffer_load_dwordx4 {v(YL+8,4)}, v{vYA}, s[{SWS}:{SWS+3}], s{sT3} offen sc1
    s_add_u32 s{sCNT}, s{sCNT}, 1
    s_cmp_gt_u32 s{sCNT}, {SPIN}
    s_cbranch_scc1 L_ypollx
    s_waitcnt vmcnt(2)
    v_max3_u32 v2, v{YL}, v{YL+1}, v{YL+2}
    s_waitcnt vmcnt(1)
    v_max3_u32 v2, v2, v{YL+3}, v{YL+4}
    v_max3_u32 v2, v2, v{YL+5}, v{YL+6}
    s_waitcnt vmcnt(0)
    v_max3_u32 v2, v2, v{YL+7}, v{YL+8}
    v_max3_u32 v2, v2, v{YL+9}, v{YL+10}
    v_max_u32 v2, v2, v{YL+11}
    v_cmp_eq_u32 vcc, -1, v2
    s_cbranch_vccnz L_ypoll
    L_ypollx:
    s_waitcnt vmcnt(0)
    """)
    stamp(10)
    for it in range(2):
        A(f"ds_write2st64_b32 v{vPW}, v{YL+4*it}, v{YL+4*it+1} offset0:{4*it} offset1:{10+4*it}")
        A(f"ds_write2st64_b32 v{vPW}, v{YL+4*it+2}, v{YL+4*it+3} offset0:{20+4*it} offset1:{30+4*it}")
    A(f"""
    s_cmp_lt_u32 s{sW}, 2
    s_cbranch_scc0 L_pw2
    ds_write2st64_b32 v{vPW}, v{YL+8}, v{YL+9} offset0:8 offset1:18
    ds_write2st64_b32 v{vPW}, v{YL+10}, v{YL+11} offset0:28 offset1:38
    L_pw2:
    s_waitcnt lgkmcnt(0)
    s_barrier
    """)
    Q, YF, HF, HP, LP = 96, 108, 128, 148, 160
    A(f"""
    ds_read_b128 {v(Q,4)}, v{vPR}
    ds_read_b128 {v(Q+4,4)}, v{vPR} offset:16
    ds_read_b64 {v(Q+8,2)}, v{vPS}
    """)
    for i in range(10):
        if i == 0: A("s_waitcnt lgkmcnt(2)")
        if i == 4: A("s_waitcnt lgkmcnt(1)")
        if i == 8: A("s_waitcnt lgkmcnt(0)")
        A(f"v_lshlrev_b32 v{YF+i}, 16, v{Q+i}\nv_and_b32 v{YF+10+i}, s{sMASK}, v{Q+i}")
    def hp(t, p): return HP + 6*t + p
    def lp(t, p): return LP + 6*t + p
    for p in range(5):
        for t in range(2):
            o = 10*t + 2*p
            if EXACT:
                A(f"v_pk_mul_f32 {v(YF+o,2)}, {v(LF+o,2)}, {v(YF+o,2)}")
                A(f"v_cvt_pk_bf16_f32 v{YF+o}, v{YF+o}, v{YF+o+1}\nv_and_b32 v{YF+o+1}, s{sMASK}, v{YF+o}\nv_lshlrev_b32 v{YF+o}, 16, v{YF+o}")
                A(f"v_pk_add_f32 {v(YF+o,2)}, {v(XF+o,2)}, {v(YF+o,2)}")
            else:
                A(f"v_pk_fma_f32 {v(YF+o,2)}, {v(LF+o,2)}, {v(YF+o,2)}, {v(XF+o,2)}")
            A(f"v_cvt_pk_bf16_f32 v{hp(t,p)}, v{YF+o}, v{YF+o+1}")
            unpack(HF+o, hp(t, p))
    stats(HF, DF, 92)
    RA = 92
    def wr(p): return WR4 + p if p < 4 else WR1
    for p in range(5):
        for t in range(2):
            o = 10*t + 2*p
            A(f"v_cvt_pk_bf16_f32 v{lp(t,p)}, v{DF+o}, v{DF+o+1}")
    A(f"v_mov_b32 v{RA+1}, 0\nv_mov_b32 v{RA+3}, 0")
    for p in range(5):
        for t in range(2):
            if p == 0: A(f"v_dot2_f32_bf16 v{RA+2*t}, v{lp(t,p)}, v{wr(p)}, 0")
            else: A(f"v_dot2_f32_bf16 v{RA+2*t}, v{lp(t,p)}, v{wr(p)}, v{RA+2*t}")
    vKI, vKA = 8, 9
    fill = [f"v_lshrrev_b32 v{vKI}, 5, v1",
            f"s_lshl_b32 s{sT}, s{sTAU}, 3",
            f"s_lshl_b32 s{sT2}, s{sW}, 1",
            f"s_add_u32 s{sT}, s{sT}, s{sT2}",
            f"s_sub_u32 s{sT}, 2047, s{sT}",
            f"s_lshl_b32 s{sT2}, s{sW}, 3",
            f"s_add_u32 s{sT2}, s{sT2}, {L_S}",
            f"v_lshl_add_u32 v{vKA}, v{vKI}, 2, s{sT2}",
            f"v_sub_u32 v{vKI}, s{sT}, v{vKI}",
            f"v_mov_b32 v10, {L_S}"]
    fill = reduce2(RA, RA+2, fill)
    for f in fill: A(f)
    KK = 172
    A(f"""
    v_cvt_pk_bf16_f32 v{Z}, v{Z}, v{Z}
    v_ashrrev_i32 v{Z1}, 31, v{Z}
    v_or_b32 v{Z1}, 0x80000000, v{Z1}
    v_xor_b32 v{Z}, v{Z}, v{Z1}
    v_and_or_b32 v{Z}, v{Z}, s{sMASK}, v{vKI}
    s_mov_b32 exec_lo, 0x10000
    s_mov_b32 exec_hi, 0x10000
    ds_write_b32 v{vKA}, v{Z}
    s_mov_b64 exec, -1
    s_waitcnt lgkmcnt(0)
    s_barrier
    ds_read_b128 {v(KK,4)}, v10
    ds_read_b128 {v(KK+4,4)}, v10 offset:16
    s_lshl_b32 s{sT}, s{sTAU}, 7
    s_add_u32 s{sT}, s{sT}, {G_OFF}
    s_cmp_eq_u32 s{sW}, 0
    s_cselect_b32 s{sT}, s{sT}, {WS_SIZE}
    s_waitcnt lgkmcnt(1)
    v_max_u32 v{KK+8}, v{KK}, v{KK+1}
    v_min_u32 v{KK+9}, v{KK}, v{KK+1}
    """)
    for i in range(2, 8):
        if i == 4: A("s_waitcnt lgkmcnt(0)")
        A(f"v_med3_u32 v{KK+9}, v{KK+8}, v{KK+9}, v{KK+i}\nv_max_u32 v{KK+8}, v{KK+8}, v{KK+i}")
    A(f"""
    s_mov_b64 exec, 1
    buffer_store_dwordx2 {v(KK+8,2)}, off, s[{SWS}:{SWS+3}], s{sT} sc1
    s_mov_b64 exec, -1
    v_readfirstlane_b32 s{sK1}, v{KK+8}
    v_readfirstlane_b32 s{sK2}, v{KK+9}
    """)
    stamp(11)
    vRA, vRB = 4, 5
    A(f"v_lshlrev_b32 v{vRA}, 4, v1\nv_lshlrev_b32 v{vRB}, 2, v1\nv_add_u32 v{vRB}, 1024, v{vRB}")
    def publish(src, off, tagname):
        SEL = 184
        for slot, sk in enumerate((sK1, sK2)):
            A(f"""
            s_not_b32 s{sT}, s{sk}
            s_bfe_u32 s{sT2}, s{sT}, 0x20001
            s_cmp_eq_u32 s{sT2}, s{sW}
            s_cbranch_scc0 L_{tagname}{slot}
            s_bitcmp1_b32 s{sT}, 0
            s_cselect_b64 s[{sE0}:{sE0+1}], -1, 0
            s_mul_i32 s{sT3}, s{sTAU}, 2560
            s_add_u32 s{sT3}, s{sT3}, {off + 1280*slot}
            """)
            for p in range(5):
                A(f"v_cndmask_b32 v{SEL+6*slot+p}, v{src+p}, v{src+6+p}, s[{sE0}:{sE0+1}]")
            A(f"""
            buffer_store_dwordx4 {v(SEL+6*slot,4)}, v{vRA}, s[{SWS}:{SWS+3}], s{sT3} offen sc1
            buffer_store_dword v{SEL+6*slot+4}, v{vRB}, s[{SWS}:{SWS+3}], s{sT3} offen sc1
            L_{tagname}{slot}:
            """)
    publish(LP, R_OFF, 'pl')
    OP = 196
    for p in range(5):
        for t in range(2):
            o = 10*t + 2*p
            unpack(DF+o, lp(t, p))
            A(f"v_pk_add_f32 {v(DF+o,2)}, {v(DF+o,2)}, {v(HF+o,2)}")
            A(f"v_cvt_pk_bf16_f32 v{OP+6*t+p}, v{DF+o}, v{DF+o+1}")
    A(f"""
    buffer_store_dwordx4 {v(OP,4)}, v{vXA}, s[{SOUT}:{SOUT+3}], 0 offen sc1
    buffer_store_dword v{OP+4}, v{vXB}, s[{SOUT}:{SOUT+3}], 0 offen sc1
    buffer_store_dwordx4 {v(OP+6,4)}, v{vXA}, s[{SOUT}:{SOUT+3}], 0 offen offset:1280 sc1
    buffer_store_dword v{OP+10}, v{vXB}, s[{SOUT}:{SOUT+3}], 0 offen offset:1280 sc1
    """)
    publish(HP, H_OFF, 'ph')
    A(f"""
    s_waitcnt vmcnt(0)
    s_barrier
    s_lshl_b32 s{sT}, s{sTAU}, 7
    s_add_u32 s{sT}, s{sT}, {D_OFF}
    s_cmp_eq_u32 s{sW}, 0
    s_cselect_b32 s{sT}, s{sT}, {WS_SIZE}
    v_mov_b32 v2, 1
    s_mov_b64 exec, 1
    buffer_store_dword v2, off, s[{SWS}:{SWS+3}], s{sT} sc1
    s_mov_b64 exec, -1
    """)
    stamp(12)
    A(f"s_cmp_lt_u32 s{sMP}, 11\ns_cbranch_scc0 L_fin")

    K1, K2, T1, T2 = 32, 33, 34, 35
    A(f"""
    v_lshlrev_b32 v4, 7, v0
    s_mov_b32 s{sT}, {G_OFF}
    s_mov_b32 s{sCNT}, 0
    L_gpoll:
    buffer_load_dwordx2 {v(K1,2)}, v4, s[{SWS}:{SWS+3}], s{sT} offen sc1
    s_add_u32 s{sCNT}, s{sCNT}, 1
    s_cmp_gt_u32 s{sCNT}, {SPIN}
    s_cbranch_scc1 L_gpollx
    s_waitcnt vmcnt(0)
    v_max_u32 v2, v{K1}, v{K2}
    v_cmp_eq_u32 vcc, -1, v2
    s_and_b64 exec, exec, vcc
    s_cbranch_execnz L_gpoll
    L_gpollx:
    s_mov_b64 exec, -1
    s_waitcnt vmcnt(0)
    """)
    stamp(13)
    def merge_rows():
        for m in ("quad_perm:[1,0,3,2]", "quad_perm:[2,3,0,1]", "row_half_mirror", "row_mirror"):
            A(f"""
            v_min_u32_dpp v{T1}, v{K1}, v{K1} {m} row_mask:0xf bank_mask:0xf
            v_max_u32_dpp v{T2}, v{K2}, v{K2} {m} row_mask:0xf bank_mask:0xf
            v_max_u32_dpp v{K1}, v{K1}, v{K1} {m} row_mask:0xf bank_mask:0xf
            v_max_u32 v{K2}, v{T1}, v{T2}
            """)
    merge_rows()
    A(f"""
    v_lshrrev_b32 v5, 4, v0
    v_lshlrev_b32 v5, 3, v5
    v_add_u32 v5, {L_S+64}, v5
    v_and_b32 v6, 15, v1
    v_lshlrev_b32 v6, 3, v6
    v_add_u32 v6, {L_S+64}, v6
    ds_write_b64 v5, {v(K1,2)}
    s_waitcnt lgkmcnt(0)
    s_barrier
    ds_read_b64 {v(K1,2)}, v6
    s_waitcnt lgkmcnt(0)
    """)
    merge_rows()
    sTA, sTB, sRA, sRB = sP0, sP0+1, sP1, sP1+1
    A(f"""
    v_readfirstlane_b32 s{sK1}, v{K1}
    v_readfirstlane_b32 s{sK2}, v{K2}
    s_not_b32 s{sTA}, s{sK1}
    s_and_b32 s{sTA}, s{sTA}, 0x7ff
    s_not_b32 s{sTB}, s{sK2}
    s_and_b32 s{sTB}, s{sTB}, 0x7ff
    s_lshr_b32 s{sT}, s{sTA}, 3
    s_lshr_b32 s{sT2}, s{sTB}, 3
    s_mul_i32 s{sRA}, s{sT}, 2560
    s_mul_i32 s{sRB}, s{sT2}, 2560
    s_cmp_eq_u32 s{sT}, s{sT2}
    s_cselect_b32 s{sT3}, 1280, 0
    s_add_u32 s{sRB}, s{sRB}, s{sT3}
    s_cmp_lt_u32 s{sMP}, 6
    s_cbranch_scc0 L_down
    v_and_b32 v2, 1, v1
    v_cmp_eq_u32 vcc, 1, v2
    v_mov_b32 v7, s{sRA}
    v_mov_b32 v8, s{sRB}
    v_cndmask_b32 v7, v7, v8, vcc
    v_lshrrev_b32 v3, 4, v1
    v_lshl_add_u32 v7, v3, 4, v7
    s_mul_i32 s{sT3}, s{sW}, 320
    s_add_u32 s{sT3}, s{sT3}, {R_OFF}
    s_mov_b32 s{sCNT}, 0
    L_xpoll:
    """)
    XS = 40
    for i in range(5):
        A(f"buffer_load_dwordx4 {v(XS+4*i,4)}, v7, s[{SWS}:{SWS+3}], s{sT3} offen offset:{64*i} sc1")
    A(f"""
    s_add_u32 s{sCNT}, s{sCNT}, 1
    s_cmp_gt_u32 s{sCNT}, {SPIN}
    s_cbranch_scc1 L_xpollx
    s_waitcnt vmcnt(0)
    v_max3_u32 v2, v{XS}, v{XS+1}, v{XS+2}
    """)
    for i in range(3, 19, 2): A(f"v_max3_u32 v2, v2, v{XS+i}, v{XS+i+1}")
    A(f"""
    v_max_u32 v2, v2, v{XS+19}
    v_cmp_eq_u32 vcc, -1, v2
    s_cbranch_vccnz L_xpoll
    L_xpollx:
    s_waitcnt vmcnt(0)
    """)
    stamp(14)
    DG, DU = 64, 72
    for i in range(5):
        for ct in range(2):
            A(f"v_mfma_f32_16x16x32_bf16 {v(DG+4*ct,4)}, {a(AG+8*i+4*ct,4)}, {v(XS+4*i,4)}, {v(DG+4*ct,4) if i else 0}")
            A(f"v_mfma_f32_16x16x32_bf16 {v(DU+4*ct,4)}, {a(AU+8*i+4*ct,4)}, {v(XS+4*i,4)}, {v(DU+4*ct,4) if i else 0}")
    L_F = L_P2
    PG = 80
    A(f"""
    v_and_b32 v2, 15, v1
    v_lshlrev_b32 v5, 7, v2
    v_lshl_add_u32 v5, v3, 4, v5
    s_lshl_b32 s{sT}, s{sW}, 9
    s_add_u32 s{sT}, s{sT}, {L_F}
    v_add_u32 v5, s{sT}, v5
    v_lshlrev_b32 v6, 2, v1
    v_add_u32 v6, {L_F}, v6
    s_mov_b32 exec_lo, 0x00030003
    s_mov_b32 exec_hi, 0x00030003
    ds_write_b128 v5, {v(DG,4)}
    ds_write_b128 v5, {v(DU,4)} offset:256
    ds_write_b128 v5, {v(DG+4,4)} offset:64
    ds_write_b128 v5, {v(DU+4,4)} offset:320
    s_mov_b64 exec, -1
    s_waitcnt lgkmcnt(0)
    s_barrier
    s_cmp_eq_u32 s{sW}, 0
    s_cbranch_scc0 L_fin
    """)
    for w in range(4):
        A(f"ds_read2st64_b32 {v(PG+2*w,2)}, v6 offset0:{2*w} offset1:{2*w+1}")
    A(f"""
    s_lshl_b32 s{sT}, s{sJ}, 7
    s_add_u32 s{sT}, s{sT}, {A_OFF}
    v_lshlrev_b32 v6, 1, v1
    s_waitcnt lgkmcnt(2)
    v_pk_add_f32 {v(PG,2)}, {v(PG,2)}, {v(PG+2,2)}
    s_waitcnt lgkmcnt(0)
    v_pk_add_f32 {v(PG+4,2)}, {v(PG+4,2)}, {v(PG+6,2)}
    v_pk_add_f32 {v(PG,2)}, {v(PG,2)}, {v(PG+4,2)}
    v_cvt_pk_bf16_f32 v{PG}, v{PG}, v{PG+1}
    v_and_b32 v{PG+1}, s{sMASK}, v{PG}
    v_lshlrev_b32 v{PG}, 16, v{PG}
    v_mul_f32 v{PG+2}, {-1.4426950408889634!r}, v{PG}
    v_exp_f32 v{PG+2}, v{PG+2}
    v_add_f32 v{PG+2}, 1.0, v{PG+2}
    v_rcp_f32 v{PG+2}, v{PG+2}
    v_mul_f32 v{PG}, v{PG}, v{PG+2}
    v_cvt_pk_bf16_f32 v{PG}, v{PG}, v{PG}
    v_lshlrev_b32 v{PG}, 16, v{PG}
    v_mul_f32 v{PG}, v{PG}, v{PG+1}
    v_mov_b32_dpp v{PG+1}, v{PG} quad_perm:[1,0,3,2] row_mask:0xf bank_mask:0xf
    v_cvt_pk_bf16_f32 v{PG}, v{PG}, v{PG+1}
    s_mov_b32 exec_lo, 0x55555555
    s_mov_b32 exec_hi, 0x55555555
    buffer_store_dword v{PG}, v6, s[{SWS}:{SWS+3}], s{sT} offen sc1
    s_mov_b64 exec, -1
    """)
    stamp(15)
    A("s_branch L_fin\nL_down:")
    vTK, vLN, vHH, vSG, vOA = 88, 89, 90, 91, 92
    DU = DG + 4
    A(f"""
    s_cmp_eq_u32 s{sW}, 0
    s_cbranch_scc0 L_nofin
    v_bfe_u32 v2, v1, 4, 1
    v_cmp_eq_u32 vcc, 1, v2
    v_mov_b32 v5, s{sTA}
    v_mov_b32 v6, s{sTB}
    v_cndmask_b32 v{vTK}, v5, v6, vcc
    v_mov_b32 v5, s{sRA}
    v_mov_b32 v6, s{sRB}
    v_cndmask_b32 v8, v5, v6, vcc
    v_mov_b32 v5, s{sK1}
    v_mov_b32 v6, s{sK2}
    v_cndmask_b32 v{vSG}, v5, v6, vcc
    v_lshrrev_b32 v9, 3, v{vTK}
    v_lshlrev_b32 v9, 7, v9
    s_mov_b32 s{sT}, {D_OFF}
    s_mov_b32 s{sCNT}, 0
    L_dpoll:
    buffer_load_dword v10, v9, s[{SWS}:{SWS+3}], s{sT} offen sc1
    s_add_u32 s{sCNT}, s{sCNT}, 1
    s_cmp_gt_u32 s{sCNT}, {SPIN}
    s_cbranch_scc1 L_dpollx
    s_waitcnt vmcnt(0)
    v_cmp_ne_u32 vcc, 1, v10
    s_cbranch_vccnz L_dpoll
    L_dpollx:
    v_and_b32 v2, 15, v1
    s_lshl_b32 s{sT}, s{sJD}, 5
    v_lshl_add_u32 v2, v2, 1, s{sT}
    v_add_u32 v8, v8, v2
    s_mov_b32 s{sT}, {R_OFF}
    s_mov_b32 s{sT2}, {H_OFF}
    buffer_load_ushort v{vLN}, v8, s[{SWS}:{SWS+3}], s{sT} offen sc1
    buffer_load_ushort v{vHH}, v8, s[{SWS}:{SWS+3}], s{sT2} offen sc1
    v_mul_u32_u24 v{vOA}, 1280, v{vTK}
    v_add_u32 v{vOA}, v{vOA}, v2
    v_not_b32 v5, v{vSG}
    v_ashrrev_i32 v5, 31, v5
    v_or_b32 v5, 0x80000000, v5
    v_xor_b32 v{vSG}, v{vSG}, v5
    v_and_b32 v{vSG}, s{sMASK}, v{vSG}
    v_mul_f32 v{vSG}, {-1.4426950408889634!r}, v{vSG}
    v_exp_f32 v{vSG}, v{vSG}
    v_add_f32 v{vSG}, 1.0, v{vSG}
    v_rcp_f32 v{vSG}, v{vSG}
    v_cvt_pk_bf16_f32 v{vSG}, v{vSG}, v{vSG}
    v_lshlrev_b32 v{vSG}, 16, v{vSG}
    L_nofin:
    v_and_b32 v2, 1, v1
    v_lshlrev_b32 v7, 6, v2
    v_lshrrev_b32 v2, 4, v1
    v_lshl_add_u32 v7, v2, 4, v7
    s_mul_i32 s{sT3}, s{sW}, {12*128}
    s_add_u32 s{sT3}, s{sT3}, {A_OFF}
    s_mov_b32 s{sCNT}, 0
    L_apoll:
    """)
    AS = 96
    for i in range(12):
        A(f"buffer_load_dwordx4 {v(AS+4*i,4)}, v7, s[{SWS}:{SWS+3}], s{sT3} offen offset:{128*i} sc1")
    A(f"""
    s_add_u32 s{sCNT}, s{sCNT}, 1
    s_cmp_gt_u32 s{sCNT}, {SPIN}
    s_cbranch_scc1 L_apollx
    s_waitcnt vmcnt(0)
    v_max3_u32 v2, v{AS}, v{AS+1}, v{AS+2}
    """)
    for i in range(3, 47, 2): A(f"v_max3_u32 v2, v2, v{AS+i}, v{AS+i+1}")
    A(f"""
    v_max_u32 v2, v2, v{AS+47}
    v_cmp_eq_u32 vcc, -1, v2
    s_cbranch_vccnz L_apoll
    L_apollx:
    s_waitcnt vmcnt(0)
    """)
    stamp(16)
    for i in range(12):
        d = DG + 4*(i % 2)
        A(f"v_mfma_f32_16x16x32_bf16 {v(d,4)}, {a(AD+4*i,4)}, {v(AS+4*i,4)}, {v(d,4) if i > 1 else 0}")
    L_D = L_S + 1280
    A(f"""
    v_and_b32 v2, 15, v1
    v_lshrrev_b32 v3, 4, v1
    v_lshlrev_b32 v5, 6, v2
    v_lshl_add_u32 v5, v3, 4, v5
    s_lshl_b32 s{sT}, s{sW}, 7
    s_add_u32 s{sT}, s{sT}, {L_D}
    v_add_u32 v5, s{sT}, v5
    v_lshlrev_b32 v6, 2, v1
    v_add_u32 v6, {L_D}, v6
    v_pk_add_f32 {v(DG,2)}, {v(DG,2)}, {v(DU,2)}
    v_pk_add_f32 {v(DG+2,2)}, {v(DG+2,2)}, {v(DU+2,2)}
    s_mov_b32 exec_lo, 0x00030003
    s_mov_b32 exec_hi, 0x00030003
    ds_write_b128 v5, {v(DG,4)}
    s_mov_b64 exec, -1
    s_waitcnt lgkmcnt(0)
    s_barrier
    s_cmp_eq_u32 s{sW}, 0
    s_cbranch_scc0 L_fin
    ds_read2_b32 {v(PG,2)}, v6 offset0:0 offset1:32
    ds_read2_b32 {v(PG+2,2)}, v6 offset0:64 offset1:96
    v_lshlrev_b32 v{vLN}, 16, v{vLN}
    v_lshlrev_b32 v{vHH}, 16, v{vHH}
    s_waitcnt lgkmcnt(0)
    v_pk_add_f32 {v(PG,2)}, {v(PG,2)}, {v(PG+2,2)}
    v_add_f32 v{PG}, v{PG}, v{PG+1}
    """)
    rnd(PG)
    A(f"v_mul_f32 v{PG}, v{PG}, v{vSG}")
    rnd(PG)
    A(f"v_add_f32 v{PG}, v{PG}, v{vLN}")
    rnd(PG)
    A(f"""
    v_add_f32 v{PG}, v{PG}, v{vHH}
    v_mov_b32_dpp v{PG+1}, v{PG} quad_perm:[1,0,3,2] row_mask:0xf bank_mask:0xf
    v_cvt_pk_bf16_f32 v{PG}, v{PG}, v{PG+1}
    s_mov_b32 exec_lo, 0x55555555
    s_mov_b32 exec_hi, 0
    buffer_store_dword v{PG}, v{vOA}, s[{SOUT}:{SOUT+3}], 0 offen sc1
    s_mov_b32 s{sT}, {E_OFF}
    s_cmp_eq_u32 s{sJD}, 0
    s_cselect_b32 s{sT}, s{sT}, {WS_SIZE}
    v_mov_b32 v2, s{sTAG}
    s_mov_b64 exec, 1
    buffer_store_dword v2, off, s[{SWS}:{SWS+3}], s{sT} sc1
    s_mov_b64 exec, -1
    """)
    A("L_fin:")
    if STAMP:
        stamp(17)
        A(f"""
        s_lshl_b32 s{sT}, s2, 10
        s_lshl_b32 s{sT2}, s{sW}, 8
        s_add_u32 s{sT}, s{sT}, s{sT2}
        s_add_u32 s{sT}, s{sT}, {T_OFF}
        v_lshlrev_b32 v2, 2, v1
        buffer_store_dword v{VSTAMP}, v2, s[{SWS}:{SWS+3}], s{sT} offen
        """)
    if STAMP == 2:
        sel = [0, 0, 2, 3, 7, 8, 10, 11, 12, 13, 14, 15, 16, 17, 1, 6]
        A(f"v_mov_b32 v4, 0")
        for i, t in enumerate(sel):
            A(f"v_readlane_b32 s{sT}, v{VSTAMP}, {t}")
            if i == 0: A(f"s_not_b32 s{sT}, s{sT}")
            A(f"s_nop 3\nv_writelane_b32 v4, s{sT}, {i}")
        A(f"s_mov_b64 exec, 0xffff\nv_lshlrev_b32 v2, 2, v1\nbuffer_atomic_umax v4, v2, s[{SDBG}:{SDBG+3}], 0 offen sc1")
    A("L_end:\ns_endpgm")
    npad = A.pad()
    hdr = open(os.path.join(os.path.dirname(os.path.abspath(__file__)), 'header.txt')).read()
    out = hdr + f"; @launch grid=(256,1,1) block=(256,1,1) lds={LDS_SIZE}\n"
    out += f""".amdgcn_target "amdgcn-amd-amdhsa--gfx950"
.text
.globl {NAME}
.p2align 8
.type {NAME},@function
"""
    out += A.text()
    out += f""".section .rodata,"a"
.p2align 6
.amdhsa_kernel {NAME}
  .amdhsa_next_free_vgpr 512
  .amdhsa_next_free_sgpr 102
  .amdhsa_accum_offset 256
  .amdhsa_group_segment_fixed_size 0
  .amdhsa_kernarg_size 112
  .amdhsa_user_sgpr_count 2
  .amdhsa_user_sgpr_kernarg_segment_ptr 1
  .amdhsa_system_sgpr_workgroup_id_x 1
  .amdhsa_float_denorm_mode_32 3
.end_amdhsa_kernel
"""
    return out, npad

if __name__ == "__main__":
    opt = {}
    outp = None
    for arg in sys.argv[1:]:
        if '=' in arg:
            k, val = arg.split('='); opt[k] = int(val)
        else:
            outp = arg
    txt, npad = build(opt)
    open(outp or "sequential_preLN__ssm_conv_h3__moe_arch_mod__prompt.s", "w").write(txt)
    print("nops inserted:", npad, "lines:", txt.count("\n"))
```

```python
import sys, os
sys.path.insert(0, os.path.dirname(os.path.abspath(__file__)))
from asmlib import Asm

NAME = "sequential_preLN__ssm_conv_h3__moe_arch_mod__prompt_kernel"

U_OFF  = 0x000000
Y_OFF  = 0x280000
G_OFF  = 0x504000
R_OFF  = 0x510000
H_OFF  = 0x5B0000
A_OFF  = 0x650000
D_OFF  = 0x660000
F0_OFF = 0x670000
F1_OFF = 0x680000
E_OFF  = 0x690000
T_OFF  = 0x700000
WS_SIZE = 0x800000

KC_STRIDE = 4160
L_K  = 0
L_U  = 66560
UQ   = 1312
L_P0 = L_U + 4*5248
L_Y  = L_P0 + 16384
L_P2 = L_Y + 4*4352
L_S  = L_P2 + 10240
LDS_SIZE = L_S + 2048

SPIN = 40000

def v(i, n=1): return f"v{i}" if n == 1 else f"v[{i}:{i+n-1}]"
def a(i, n=1): return f"a{i}" if n == 1 else f"a[{i}:{i+n-1}]"
def s(i, n=1): return f"s{i}" if n == 1 else f"s[{i}:{i+n-1}]"

def build(opt):
    A = Asm()
    STAMP = opt.get('stamp', 0)
    EXACT = opt.get('exact', 1)
    nst = [0]
    def stamp(tag):
        if STAMP:
            k = nst[0]; nst[0] += 1
            A(f"s_memrealtime s[{STAMPTMP}:{STAMPTMP+1}]\ns_waitcnt lgkmcnt(0)\nv_writelane_b32 v{VSTAMP}, s{STAMPTMP}, {tag}")
    def cstamp(tag):
        if STAMP:
            A(f"s_memtime s[{STAMPTMP}:{STAMPTMP+1}]\ns_waitcnt lgkmcnt(0)\nv_writelane_b32 v{VSTAMP}, s{STAMPTMP}, {tag}")
    STAMPTMP = 98
    VSTAMP = 15

    SK, SV, SWS, SKR, SOUT, SDBG, SX = 36, 40, 44, 48, 52, 56, 60
    sW, sG, sM, sMASK, sT = 3, 4, 5, 6, 7
    sTAU, sCH, sDLO, sDHI, sCNT, sT2, sT3, sT4 = 64, 65, 66, 67, 68, 69, 70, 71
    sUO, sYO, sJ, sTB16 = 72, 73, 74, 75
    sE0 = 76
    sP0 = 78
    sP1 = 80
    sK1, sK2 = 82, 83
    sR0 = 84
    sPC = 88
    sTAG = 92
    sGO = 93
    sT5 = 97
    sY1, sY2 = 10, 11
    sTAG4, sLO, sRNG = 95, 79, 81
    sQ0, sQ1 = 94, 96

    def srd(base, ptr, nbytes):
        A(f"s_mov_b32 s{base}, s{ptr}\ns_mov_b32 s{base+1}, s{ptr+1}\ns_mov_b32 s{base+2}, {nbytes}\ns_mov_b32 s{base+3}, 0x00020000")

    S1 = opt.get('s1', 1)
    KLATE = opt.get('klate', 0)
    EXA = opt.get('exa', 1); EXD = opt.get('exd', 1)
    sMP = sR0 + 1
    sCGP, sTB = sR0 + 2, sR0 + 3
    vCG, vRG = 4, 5
    vA0, vA2, vA3, vUA, vSH0, vOWN = 6, 7, 8, 14, 12, 13
    vB0, vB2, vB3 = 9, 10, 11
    A(f"{NAME}:")
    A(f"""
    s_load_dwordx2 s[14:15], s[0:1], 24
    s_load_dwordx2 s[{SK}:{SK+1}], s[0:1], 8
    s_load_dwordx2 s[{SV}:{SV+1}], s[0:1], 16
    s_cmp_ge_u32 s2, 256
    s_cbranch_scc1 L_end
    """)
    if STAMP:
        A(f"v_mov_b32 v{VSTAMP}, 0\ns_memrealtime s[{STAMPTMP}:{STAMPTMP+1}]")
    A(f"""
    s_getpc_b64 s[{sPC}:{sPC+1}]
    L_pc:
    s_mov_b32 s{sPC+2}, L_code_end-L_pc
    s_mov_b32 s{sPC+3}, 0x00020000
    s_bfe_u32 s{sT}, s2, 0x30003
    s_lshl_b32 s{sT}, s{sT}, 12
    v_lshlrev_b32 v2, 4, v0
    buffer_load_dword v3, v2, s[{sPC}:{sPC+3}], s{sT} offen
    s_mul_i32 s{sT2}, s2, 6554
    s_lshr_b32 s{sT2}, s{sT2}, 16
    s_mul_i32 s{sT3}, s{sT2}, 10
    s_sub_u32 s{sCGP}, s2, s{sT3}
    s_lshl_b32 s{sT3}, s{sT2}, 1
    s_sub_i32 s{sT3}, s{sT3}, 16
    s_max_i32 s{sTB}, s{sT2}, s{sT3}
    v_and_b32 v{vCG}, 7, v0
    v_lshrrev_b32 v{vRG}, 3, v0
    s_lshl_b32 s{sT3}, s{sCGP}, 9
    v_lshl_add_u32 v{vSH0}, v{vCG}, 6, s{sT3}
    s_mul_i32 s{sT}, s{sTB}, {64*1280}
    s_lshl_b32 s{sT3}, s{sCGP}, 7
    s_add_u32 s{sT}, s{sT}, s{sT3}
    v_mul_u32_u24 v{vA0}, 2560, v{vRG}
    v_lshl_add_u32 v2, v{vCG}, 4, s{sT}
    v_add_u32 v{vA0}, v2, v{vA0}
    s_mov_b32 s{SK+2}, 2621440
    s_mov_b32 s{SK+3}, s{sPC+3}
    s_mov_b32 s{SV+2}, s{SK+2}
    s_mov_b32 s{SV+3}, s{sPC+3}
    v_subrev_u32 v{vA2}, 2560, v{vA0}
    v_subrev_u32 v{vA3}, 3840, v{vA0}
    s_waitcnt lgkmcnt(0)
    """)
    KV = 148
    SHR, SHC, ACC0 = 204, 220, 32
    PZ = 252
    def kx4(tile, r): return KV + 28*tile + 4*r
    def vx4(tile, t): return KV + 28*tile + 20 + 4*t
    def kv_loads(tile):
        so = "0" if tile == 0 else f"s{sT4}"
        A(f"""
        buffer_load_dwordx4 {v(vx4(tile,0),4)}, v{vA0}, s[{SV}:{SV+3}], {so} offen
        buffer_load_dwordx4 {v(vx4(tile,1),4)}, v{vA0}, s[{SV}:{SV+3}], {so} offen offset:1280
        buffer_load_dwordx4 {v(kx4(tile,3),4)}, v{vA0}, s[{SK}:{SK+3}], {so} offen
        buffer_load_dwordx4 {v(kx4(tile,4),4)}, v{vA0}, s[{SK}:{SK+3}], {so} offen offset:1280
        buffer_load_dwordx4 {v(kx4(tile,0),4)}, v{vA3}, s[{SK}:{SK+3}], {so} offen
        buffer_load_dwordx4 {v(kx4(tile,1),4)}, v{vA2}, s[{SK}:{SK+3}], {so} offen
        buffer_load_dwordx4 {v(kx4(tile,2),4)}, v{vA2}, s[{SK}:{SK+3}], {so} offen offset:1280
        """)
    def u_stores(regs, tile):
        for it in range(2):
            A(f"s_add_u32 s{sT}, s{sUO}, {it*32*4096 + tile*128}")
            A(f"buffer_store_dwordx4 {v(regs[it],4)}, v{vUA}, s[{SWS}:{SWS+3}], s{sT} offen sc1")
    def own_poison():
        A(f"""
        v_mov_b32 v{PZ}, -1
        v_mov_b32 v{PZ+1}, -1
        v_mov_b32 v{PZ+2}, -1
        v_mov_b32 v{PZ+3}, -1
        s_mul_i32 s{sT3}, s{sTAU}, 2560
        s_add_u32 s{sT3}, s{sT3}, {R_OFF}
        v_mov_b32 v{vOWN}, s{sT3}
        s_lshl_b32 s{sT}, s{sTAU}, 7
        s_add_u32 s{sT2}, s{sT}, {G_OFF} - 2560
        v_mov_b32 v2, s{sT2}
        v_cmp_eq_u32 vcc, 20, v{vRG}
        v_cndmask_b32 v{vOWN}, v{vOWN}, v2, vcc
        s_add_u32 s{sT2}, s{sT}, {D_OFF} - 2688
        v_mov_b32 v2, s{sT2}
        v_cmp_eq_u32 vcc, 21, v{vRG}
        v_cndmask_b32 v{vOWN}, v{vOWN}, v2, vcc
        s_lshl_b32 s{sT}, s{sJ}, 7
        s_add_u32 s{sT2}, s{sT}, {A_OFF} - 2816
        s_cmp_lt_u32 s{sMP}, 6
        s_cselect_b32 s{sT2}, s{sT2}, {WS_SIZE}
        v_mov_b32 v2, s{sT2}
        v_cmp_eq_u32 vcc, 22, v{vRG}
        v_cndmask_b32 v{vOWN}, v{vOWN}, v2, vcc
        v_mov_b32 v2, {WS_SIZE}
        v_cmp_lt_u32 vcc, 22, v{vRG}
        v_cndmask_b32 v{vOWN}, v{vOWN}, v2, vcc
        v_lshl_add_u32 v{vOWN}, v0, 4, v{vOWN}
        buffer_store_dwordx4 {v(PZ,4)}, v{vOWN}, s[{SWS}:{SWS+3}], 0 offen sc1
        """)
    def arrive(off, sval=None):
        sval = sTAG if sval is None else sval
        A(f"""
        s_lshl_b32 s{sT}, s2, 7
        s_add_u32 s{sT}, s{sT}, {off}
        s_cmp_eq_u32 s{sW}, 0
        s_cselect_b32 s{sT}, s{sT}, {WS_SIZE}
        v_mov_b32 v2, s{sval}
        s_mov_b64 exec, 1
        buffer_store_dword v2, off, s[{SWS}:{SWS+3}], s{sT} sc1
        s_mov_b64 exec, -1
        """)
    XR0, XS0, XR1, XS1, WR4, WR1 = 16, 20, 22, 21, 28, 26
    vXA, vXB = 27, 3
    def x_addr():
        A(f"s_waitcnt lgkmcnt(0)\ns_add_u32 s{sTAG}, s{sTAG}, 1\ns_lshl_b32 s{sTAG4}, s{sTAG}, 2")
        srd(SX, 8, 2621440); srd(SOUT, 30, 2621440)
        A(f"""
        s_lshl_b32 s{sT2}, s{sTAU}, 2
        s_add_u32 s{sT2}, s{sT2}, s{sW}
        s_mul_i32 s{sT2}, s{sT2}, 2560
        v_lshl_add_u32 v{vXA}, v1, 4, s{sT2}
        s_add_u32 s{sT2}, s{sT2}, 1024
        v_lshl_add_u32 v{vXB2}, v1, 2, s{sT2}
        """)
    vXB2 = 13
    def x_load_list():
        return [f"buffer_load_dwordx4 {v(XR0,4)}, v{vXA}, s[{SX}:{SX+3}], 0 offen",
                f"buffer_load_dword v{XS0}, v{vXB2}, s[{SX}:{SX+3}], 0 offen",
                f"buffer_load_dwordx4 {v(XR1,4)}, v{vXA}, s[{SX}:{SX+3}], 0 offen offset:1280",
                f"buffer_load_dword v{XS1}, v{vXB2}, s[{SX}:{SX+3}], 0 offen offset:1280",
                f"v_lshlrev_b32 v2, 4, v1",
                f"global_load_dwordx4 {v(WR4,4)}, v2, s[22:23]",
                f"v_lshlrev_b32 v2, 2, v1",
                f"global_load_dword v{WR1}, v2, s[22:23] offset:1024"]
    def x_loads():
        for l in x_load_list(): A(l)
    vXB = vXB2
    KL = 76
    def k_loads():
        A(f"""
        v_lshlrev_b32 v2, 4, v1
        v_subrev_u32 v{vB0}, 64, v2
        v_subrev_u32 v{vB2}, 48, v2
        v_add_u32 v{vB3}, 960, v2
        buffer_load_dwordx4 {v(KL,4)}, v{vB0}, s[{SKR}:{SKR+3}], 0 offen
        buffer_load_dwordx2 {v(KL+4,2)}, v{vB2}, s[{SKR}:{SKR+3}], 0 offen
        """)
        for it in range(1, 5):
            A(f"buffer_load_dwordx4 {v(KL+6*it,4)}, v{vB3}, s[{SKR}:{SKR+3}], 0 offen offset:{1024*(it-1)}")
            A(f"buffer_load_dwordx2 {v(KL+6*it+4,2)}, v{vB3}, s[{SKR}:{SKR+3}], 0 offen offset:{1024*(it-1)+16}")
    def shift_consts():
        for c in range(8):
            for h in range(2):
                r = SHR + 2*c + h
                d = SHC + 4*c + 2*h
                if c % 2 == 0:
                    A(f"v_and_b32 v{d}, 0xffff, v{r}\nv_lshrrev_b32 v{d+1}, 16, v{r}")
                else:
                    A(f"v_lshlrev_b32 v{d}, 16, v{r}\nv_and_b32 v{d+1}, s{sMASK}, v{r}")
    vL0, vR0, vR1 = 6, 7, 8
    def p0_addr():
        A(f"""
        v_xor_b32 v2, 3, v{vRG}
        v_lshrrev_b32 v3, 2, v{vRG}
        v_xor_b32 v3, v3, v{vCG}
        v_and_b32 v2, 3, v2
        v_lshlrev_b32 v2, 2, v2
        v_lshl_add_u32 v2, v3, 4, v2
        v_add_u32 v2, {L_P0}, v2
        v_lshl_add_u32 v{vL0}, v{vCG}, 10, v2
        v_xor_b32 v3, s{sW}, v{vCG}
        v_lshlrev_b32 v2, 7, v{vRG}
        v_add_u32 v2, {L_P0}, v2
        v_lshl_add_u32 v{vR0}, v3, 4, v2
        v_xor_b32 v3, 4, v3
        v_lshl_add_u32 v{vR1}, v3, 4, v2
        """)
    def p0_compute(tile):
        TMP = 52
        for p0 in ((0, 1), (2, 3)):
            accs = []
            for p in p0:
                for b in range(2):
                    for t in range(2):
                        accs.append((p, b, t, ACC0 + 4*p + 2*b + t))
            for tap in range(4):
                for (p, b, t, acc) in accs:
                    kr = kx4(tile, 3 + t - tap) + p
                    w = SHC + 4*(2*p + b) + tap
                    if tap == 0: A(f"v_dot2_f32_bf16 v{acc}, v{kr}, v{w}, 0")
                    else: A(f"v_dot2c_f32_bf16 v{acc}, v{kr}, v{w}")
            for (p, b, t, acc) in accs:
                tr = TMP + (acc - ACC0) % 8
                if b == 0: A(f"v_lshlrev_b32 v{tr}, 16, v{vx4(tile,t)+p}")
                else: A(f"v_and_b32 v{tr}, s{sMASK}, v{vx4(tile,t)+p}")
            for (p, b, t, acc) in accs:
                tr = TMP + (acc - ACC0) % 8
                A(f"v_mul_f32 v{acc}, v{acc}, v{tr}")
            for p in p0:
                for b in range(2):
                    acc = ACC0 + 4*p + 2*b
                    A(f"v_cvt_pk_bf16_f32 v{acc}, v{acc+1}, v{acc}")
                    A(f"ds_write_b32 v{vL0}, v{acc} offset:{(2*p+b)*128 + 8192*tile}")
    RB = 60
    def p0_readback(tile):
        A(f"ds_read_b128 {v(RB+8*tile,4)}, v{vR0} offset:{8192*tile}")
        A(f"ds_read_b128 {v(RB+8*tile+4,4)}, v{vR1} offset:{8192*tile + 32*128}")
    def shift_loads():
        for i in range(4):
            A(f"global_load_dwordx4 {v(SHR+4*i,4)}, v{vSH0}, s[14:15] offset:{16*i}")

    shift_loads()
    kv_loads(0)
    A(f"""
    s_load_dwordx2 s[8:9], s[0:1], 0
    s_load_dwordx8 s[16:23], s[0:1], 32
    s_load_dwordx8 s[24:31], s[0:1], 64
    s_load_dwordx4 s[32:35], s[0:1], 96
    s_cmp_lt_u32 s2, 160
    s_cbranch_scc1 L_no_t1
    s_mov_b32 s{sT4}, {64*1280}
    """)
    kv_loads(1)
    A("L_no_t1:")
    if STAMP: A(f"v_writelane_b32 v{VSTAMP}, s{STAMPTMP}, 0")
    A(f"""
    v_and_b32 v1, 63, v0
    v_lshrrev_b32 v2, 6, v0
    s_mov_b32 s{sMASK}, 0xffff0000
    v_readfirstlane_b32 s{sW}, v2
    s_and_b32 s{sG}, s2, 7
    s_lshr_b32 s{sM}, s2, 3
    s_sub_u32 s{sMP}, s{sM}, 20
    v_lshlrev_b32 v{vUA}, 12, v{vRG}
    v_lshl_add_u32 v{vUA}, v{vCG}, 4, v{vUA}
    s_lshl_b32 s{sUO}, s{sCGP}, 18
    s_lshl_b32 s{sT}, s{sTB}, 7
    s_add_u32 s{sUO}, s{sUO}, s{sT}
    s_add_u32 s{sT}, s{sM}, 12
    s_and_b32 s{sT}, s{sT}, 31
    s_lshr_b32 s{sTB16}, s{sT}, 1
    s_lshl_b32 s{sTB16}, s{sTB16}, 3
    s_add_u32 s{sTB16}, s{sTB16}, s{sG}
    s_and_b32 s{sT}, s{sT}, 1
    s_lshl_b32 s{sTAU}, s{sTB16}, 1
    s_add_u32 s{sTAU}, s{sTAU}, s{sT}
    s_mul_i32 s{sJ}, s{sG}, 6
    s_add_u32 s{sJ}, s{sJ}, s{sMP}
    s_mov_b32 s{sT}, {E_OFF}
    s_waitcnt lgkmcnt(0)
    """)
    A(f"s_load_dword s{sTAG}, s[34:35], s{sT}")
    srd(SWS, 34, WS_SIZE)
    if STAMP == 2: srd(SDBG, 32, 256)
    A(f"s_cmp_lt_u32 s2, 160\ns_cbranch_scc0 L_nc_start")
    A(f"""
    s_lshl_b32 s{sCH}, s2, 2
    s_add_u32 s{sCH}, s{sCH}, s{sW}
    s_lshl_b32 s{sT}, s{sCH}, 12
    s_add_u32 s{SKR}, s16, s{sT}
    s_addc_u32 s{SKR+1}, s17, 0
    s_mov_b32 s{SKR+2}, 4096
    s_mov_b32 s{SKR+3}, 0x00020000
    s_lshr_b32 s{sT}, s{sCH}, 1
    s_lshl_b32 s{sT}, s{sT}, 2
    s_load_dword s{sDLO}, s[18:19], s{sT}
    """)
    own_poison()
    NP = 1
    if S1 == 1:
        u_stores([PZ, PZ], 0); NP = 3
    NK = 0
    if not KLATE:
        k_loads(); NK = 10
    A(f"s_waitcnt vmcnt({7+NP+NK})")
    shift_consts()
    p0_addr()
    x_addr()
    F0E = opt.get('f0e', 1) and S1 == 1 and KLATE
    if F0E:
        A("s_waitcnt vmcnt(0)\ns_barrier")
        arrive(F0_OFF)
    else:
        A(f"s_waitcnt vmcnt({NP+NK})")
    stamp(2)
    if KLATE: k_loads()
    p0_compute(0)
    A(f"s_waitcnt {'vmcnt(10) ' if (S1 == 1 and not F0E) else ''}lgkmcnt(0)\ns_barrier")
    p0_readback(0)
    if S1 == 1 and not F0E: arrive(F0_OFF)
    A("s_waitcnt lgkmcnt(0)")
    u_stores([RB, RB+4], 0)
    stamp(3)

    vB1, vB1A = 12, 14
    def f1_load():
        A(f"""
        v_subrev_u32 v{vB1A}, 160, v0
        v_cmp_gt_u32 vcc, 80, v{vB1A}
        v_cndmask_b32 v{vB1A}, v0, v1, vcc
        v_lshlrev_b32 v{vB1A}, 7, v{vB1A}
        s_mov_b32 s{sT4}, {F1_OFF}
        s_lshr_b32 s{sT}, s{sTB16}, 5
        s_add_u32 s{sT2}, s{sT}, 2
        s_cmp_lt_u32 s{sT}, {opt.get('yp', 2)}
        s_cselect_b32 s{sT}, s{sT2}, 1
        s_add_u32 s{sLO}, s{sTAG4}, s{sT}
        s_sub_u32 s{sRNG}, 3, s{sT}
        buffer_load_dword v{vB1}, v{vB1A}, s[{SWS}:{SWS+3}], s{sT4} offen sc1
        """)
    vKL, vAW, vUW, vBR, vUE, vYW, vYR, vYG = 4, 5, 6, 7, 8, 9, 10, 11
    KT = 112
    A(f"""
    s_mul_i32 s{sT}, s{sW}, {4*KC_STRIDE}
    v_lshl_add_u32 v{vKL}, v1, 4, s{sT}
    s_waitcnt vmcnt({(1 if (S1 < 2 and not F0E) else 0)+2})
    """)
    for it in range(5):
        w = KL + 6*it
        t = KT + 12*(it % 2)
        if it == 4: A("s_mov_b64 exec, 15")
        for k in range(4): A(f"v_alignbit_b32 v{t+k}, v{w+k+1}, v{w+k}, 16")
        A(f"ds_write_b128 v{vKL}, {v(t,4)} offset:{0*KC_STRIDE + 1024*it}")
        A(f"v_pk_mov_b32 {v(t+4,2)}, {v(w,2)}, {v(w+2,2)} op_sel:[1,0]")
        A(f"v_pk_mov_b32 {v(t+6,2)}, {v(w+2,2)}, {v(w+4,2)} op_sel:[1,0]")
        A(f"ds_write_b128 v{vKL}, {v(t+4,4)} offset:{1*KC_STRIDE + 1024*it}")
        for k in range(4): A(f"v_alignbit_b32 v{t+8+k}, v{w+k+2}, v{w+k+1}, 16")
        A(f"ds_write_b128 v{vKL}, {v(t+8,4)} offset:{2*KC_STRIDE + 1024*it}")
        A(f"ds_write_b128 v{vKL}, {v(w+2,4)} offset:{3*KC_STRIDE + 1024*it}")
    A("s_mov_b64 exec, -1")
    A(f"""
    v_and_b32 v2, 3, v1
    v_mul_u32_u24 v{vAW}, {KC_STRIDE}, v2
    v_lshrrev_b32 v3, 2, v1
    v_lshl_add_u32 v{vAW}, v3, 4, v{vAW}
    v_add_u32 v{vAW}, s{sT}, v{vAW}
    s_mul_i32 s{sT2}, s{sW}, {4*UQ}
    s_add_u32 s{sT2}, s{sT2}, {L_U}
    v_mul_u32_u24 v{vUW}, {UQ}, v2
    v_lshl_add_u32 v{vUW}, v3, 4, v{vUW}
    v_add_u32 v{vUW}, s{sT2}, v{vUW}
    v_and_b32 v2, 15, v1
    v_lshrrev_b32 v3, 4, v1
    v_sub_u32 v{vBR}, v2, v3
    v_lshl_add_u32 v{vBR}, v{vBR}, 4, s{sT2}
    v_add_u32 v{vBR}, 64, v{vBR}
    v_mul_u32_u24 v{vUE}, {UQ}, v3
    v_lshl_add_u32 v{vUE}, v2, 4, v{vUE}
    v_add_u32 v{vUE}, s{sT2}, v{vUE}
    v_mov_b32 v{KT}, 0
    v_mov_b32 v{KT+1}, 0
    v_mov_b32 v{KT+2}, 0
    v_mov_b32 v{KT+3}, 0
    ds_write_b128 v{vUE}, {v(KT,4)}
    v_mul_u32_u24 v{vYW}, 272, v2
    v_lshl_add_u32 v{vYW}, v3, 6, v{vYW}
    s_lshl_b32 s{sT}, s{sW}, 4
    s_add_u32 s{sT}, s{sT}, {L_Y}
    v_add_u32 v{vYW}, s{sT}, v{vYW}
    v_lshrrev_b32 v2, 4, v0
    v_mul_u32_u24 v{vYR}, 272, v2
    v_and_b32 v3, 15, v0
    v_lshl_add_u32 v{vYR}, v3, 4, v{vYR}
    v_add_u32 v{vYR}, {L_Y}, v{vYR}
    v_lshrrev_b32 v2, 3, v0
    v_mul_u32_u24 v{vYG}, 20480, v2
    v_and_b32 v3, 7, v0
    v_lshl_add_u32 v{vYG}, v3, 4, v{vYG}
    s_lshl_b32 s{sYO}, s2, 7
    s_add_u32 s{sYO}, s{sYO}, {Y_OFF}
    s_waitcnt lgkmcnt(0)
    s_bitcmp1_b32 s{sCH}, 0
    s_cselect_b32 s{sT}, 16, 0
    s_lshr_b32 s{sDLO}, s{sDLO}, s{sT}
    s_and_b32 s{sDLO}, s{sDLO}, 0xffff
    """)
    stamp(4)
    if S1 == 2:
        A("s_waitcnt vmcnt(0)\ns_barrier")
        arrive(F0_OFF)
    F0S = opt.get('f0s', 1)
    sF0, sU = sY1, sY2
    vF0, vF1, vU4 = 12, 3, 14
    A(f"""
    s_lshr_b32 s{sF0}, s2, 4
    s_lshl_b32 s{sF0}, s{sF0}, 7
    s_add_u32 s{sF0}, s{sF0}, {F0_OFF}
    v_min_u32 v{vF0}, {15 if F0S else 23}, v1
    v_mul_u32_u24 v{vF0}, 1280, v{vF0}
    v_and_b32 v{vF1}, 7, v1
    v_mul_u32_u24 v{vF1}, 1280, v{vF1}
    v_add_u32 v{vF1}, {16*1280}, v{vF1}
    buffer_load_dword v2, v{vF0}, s[{SWS}:{SWS+3}], s{sF0} offen sc1
    s_lshl_b32 s{sU}, s{sCH}, 12
    v_lshlrev_b32 v{vU4}, 4, v1
    s_lshl_b32 s{sDHI}, s{sDLO}, 16
    """)
    WV = 112
    def wreg(g, off, n):
        return a(18*g + off, n) if g < 14 else v(WV + 18*(g-14) + off, n)
    def aload(g):
        return [f"ds_read_b128 {wreg(g,4*x,4)}, v{vAW} offset:{256*g + 16*x}" for x in range(4)] + [f"ds_read_b64 {wreg(g,16,2)}, v{vAW} offset:{256*g + 64}"]
    APRE = opt.get('apre', 1)
    for st in range(APRE):
        for g in (15-st, 11-st, 7-st, 3-st):
            for l in aload(g): A(l)
    stamp(5)
    slow = []
    def flag_check(name, vaddr, vdst):
        A(f"v_cmp_ne_u32 vcc, s{sTAG}, v{vdst}\ns_cbranch_vccnz L_{name}_slow\nL_{name}_ok:")
        slow.append(f"""
        L_{name}_slow:
        s_mov_b32 s{sCNT}, 0
        L_{name}_loop:
        buffer_load_dword v{vdst}, v{vaddr}, s[{SWS}:{SWS+3}], s{sF0} offen sc1
        s_add_u32 s{sCNT}, s{sCNT}, 1
        s_cmp_gt_u32 s{sCNT}, {SPIN}
        s_cbranch_scc1 L_{name}_ok
        s_waitcnt vmcnt(0)
        v_cmp_ne_u32 vcc, s{sTAG}, v{vdst}
        s_cbranch_vccnz L_{name}_loop
        s_branch L_{name}_ok
        """)
    UL = 164
    def uload(it): return f"buffer_load_dwordx4 {v(UL+4*it,4)}, v{vU4}, s[{SWS}:{SWS+3}], s{sU} offen offset:{1024*it} sc1"
    def umax(it):
        r = UL + 4*it
        return [f"v_max3_u32 v2, v{r}, v{r+1}, v{r+2}", f"v_max3_u32 v2, v2, v{r+3}, v{r+4}", f"v_max3_u32 v2, v2, v{r+5}, v{r+6}", f"v_max_u32 v2, v2, v{r+7}"]
    def u_check(name, it):
        A(f"v_cmp_eq_u32 vcc, -1, v2\ns_cbranch_vccnz L_{name}_slow\nL_{name}_ok:")
        slow.append(f"""
        L_{name}_slow:
        s_mov_b32 s{sCNT}, 0
        L_{name}_loop:
        {uload(it)}
        {uload(it+1)}
        s_add_u32 s{sCNT}, s{sCNT}, 1
        s_cmp_gt_u32 s{sCNT}, {SPIN}
        s_waitcnt vmcnt(0)
        s_cbranch_scc1 L_{name}_ok
        """ + "\n".join(umax(it)) + f"""
        v_cmp_eq_u32 vcc, -1, v2
        s_cbranch_vccnz L_{name}_loop
        s_branch L_{name}_ok
        """)
    A("s_waitcnt vmcnt(0)")
    flag_check("f0a", vF0, 2)
    stamp(6)
    if F0S:
        A(uload(0)); A(uload(1)); A("s_waitcnt vmcnt(0)")
    else:
        for it in range(4): A(uload(it))
        A("s_waitcnt vmcnt(2)")
    for l in umax(0): A(l)
    u_check("ua", 0)
    stamp(7); cstamp(18)
    ACC, BB = 32, 64
    def breg(st, q): return BB + 16*(st % 3) + 4*q
    def bload(st):
        return [f"ds_read_b128 {v(breg(st,q),4)}, v{vBR} offset:{q*UQ + 64*st}" for q in range(4)]
    lds_issued = []
    def lds(tag, text):
        A(text); lds_issued.append(tag)
    def wait_for(*tags):
        idx = max(i for i, t in enumerate(lds_issued) if t in tags)
        n = len(lds_issued) - 1 - idx
        A(f"s_waitcnt lgkmcnt({min(n,15)})")
    def uwrite(it): return f"ds_write_b128 v{vUW}, {v(UL+4*it,4)} offset:{256 + 256*it}"
    lds(('A', -1), uwrite(0))
    for l in bload(0): lds(('B', 0), l)
    lds('uw', uwrite(1))
    for l in bload(1): lds(('B', 1), l)
    EU, EY, EM = 148, 156, 180
    YP_ = opt.get('yp', 2)
    def pre_ops(nt):
        eu = EU + 4*(nt % 2)
        ops = [('lds', ('U', nt), f"ds_read_b128 {v(eu,4)}, v{vUE} offset:{256 + 256*nt}"), ('gap', 6, None), ('wait', ('U', nt), None)]
        for x in range(8):
            j = 7 - x
            if j & 1: ops.append(('v', None, f"v_and_b32 v{EM+x}, s{sMASK}, v{eu + (j >> 1)}"))
            else: ops.append(('v', None, f"v_lshlrev_b32 v{EM+x}, 16, v{eu + (j >> 1)}"))
        return ops
    def epi_ops(nt):
        ops = []
        eu = EU + 4*(nt % 2); ey = EY + 4*(nt % 2)
        ops.append(('gap', 3, None))
        for x in range(8):
            ops.append(('v', None, f"v_fmac_f32 v{ACC + 8*nt + x}, s{sDHI}, v{EM+x}"))
        for b in range(4):
            acc = ACC + 8*nt + 2*b
            ops.append(('v', None, f"v_cvt_pk_bf16_f32 v{ey+b}, v{acc}, v{acc+1}"))
        ops.append(('lds', ('W', nt), f"ds_write_b128 v{vYW}, {v(ey,4)} offset:{4352*nt}"))
        if nt == 0:
            ops += [('v', None, f"s_lshl_b32 s{sT2}, s2, 7"), ('v', None, f"s_add_u32 s{sT2}, s{sT2}, {F1_OFF}"),
                    ('x', None, f"s_cmp_eq_u32 s{sW}, 0"), ('v', None, f"s_cselect_b32 s{sT2}, s{sT2}, {WS_SIZE}")]
        if nt <= YP_:
            ops += [('v', None, f"s_add_u32 s{sT3}, s{sTAG4}, {nt+1}"), ('v', None, f"v_mov_b32 v2, s{sT3}")]
        ops.append(('v', None, f"s_add_u32 s{sT}, s{sYO}, {32*20480*nt}"))
        ops.append(('gap', 4, None))
        if nt <= YP_: ops.append(('x', None, f"s_waitcnt vmcnt({6 if nt == 0 else 0})"))
        ops.append(('wait', ('W', nt), None))
        ops.append(('x', None, "s_barrier"))
        ops.append(('lds', ('R', nt), f"ds_read_b128 {v(eu,4)}, v{vYR} offset:{4352*nt}"))
        if nt <= YP_:
            ops += [('gap', 1, None), ('x', None, "s_mov_b64 exec, 1"), ('x', None, f"buffer_store_dword v2, off, s[{SWS}:{SWS+3}], s{sT2} sc1"), ('v', None, "s_mov_b64 exec, -1")]
        ops.append(('gap', 5, None))
        ops.append(('wait', ('R', nt), None))
        ops.append(('v', None, f"buffer_store_dwordx4 {v(eu,4)}, v{vYG}, s[{SWS}:{SWS+3}], s{sT} offen sc1"))
        return ops
    def emit_op(o):
        kind, tag, text = o
        if kind == 'lds': lds(tag, text)
        elif kind == 'wait': wait_for(tag)
        elif kind == 'gap': pass
        elif kind == 'fn': tag()
        else: A(text)
    bg = {st: [] for st in range(17)}
    YP = opt.get('yp', 2)
    s0 = 0
    if F0S:
        bg[0] += [('gap', opt.get('f0bl', 12), None), ('v', None, f"buffer_load_dword v{vF0}, v{vF1}, s[{SWS}:{SWS+3}], s{sF0} offen sc1")]
        bg[1] += [('gap', opt.get('f0bc', 24), None), ('x', None, "s_waitcnt vmcnt(0)"), ('fn', lambda: flag_check("f0b", vF1, vF0), None),
                  ('v', None, uload(2)), ('gap', 2, None), ('v', None, uload(3))]
        s0 = 2
    for nt in range(YP, 4):
        bg[s0] += [('gap', 3, None), ('x', None, f"s_add_u32 s{sT}, s{sYO}, {32*20480*nt}"),
                  ('v', None, f"buffer_store_dwordx4 {v(PZ,4)}, v{vYG}, s[{SWS}:{SWS+3}], s{sT} offen sc1")]
    for l in x_load_list():
        bg[s0+1].append(('v', None, l))
        if 'load' in l: bg[s0+1].append(('gap', 2, None))
    for nt in range(4):
        bg[4*nt + (3 if nt < 2 else 2)] += pre_ops(nt)
        bg[4*nt + 4] += epi_ops(nt)
    UCH = 5
    bg[UCH] += [('gap', opt.get('uchg', 8), None)] + [('v', None, l) for l in umax(2)] + [('gap', 1, None), ('fn', lambda: u_check("ub", 2), None),
               ('lds', 'uw', uwrite(2)), ('lds', 'uw', uwrite(3))]
    pending = []
    started = set()
    gap = 0
    CS = [12, 20, 56, 58, 100]
    for st in range(16):
        e = st - 3
        if st in (UCH + 1,):
            while pending: emit_op(pending.pop(0))
        pending += bg[st]
        wait_for(('B', st), ('A', st - 1))
        if STAMP == 1 and st % 4 == 0: A(f"s_memtime s[{CS[st//4]}:{CS[st//4]+1}]")
        mf = []
        for q in range(4):
            for nt in range(3, -1, -1):
                g = 4*nt - e
                if g < 0 or g > 4*nt + 3: continue
                for mt in range(2):
                    acc = ACC + 8*nt + 4*mt
                    c = v(acc, 4) if (nt, mt) in started else "0"
                    started.add((nt, mt))
                    mf.append(f"v_mfma_f32_16x16x32_bf16 {v(acc,4)}, {wreg(g, 12-4*q+2*mt, 4)}, {v(breg(st,q),4)}, {c}")
        extra = []
        if APRE <= st + 1 <= 3:
            for g in (14-st, 10-st, 6-st, 2-st): extra += [(('A', st), l) for l in aload(g)]
        dense = len(extra) > 0
        extra += [(('B', st + 2), l) for l in (bload(st + 2) if st + 2 < 16 else [])]
        for i, m in enumerate(mf):
            A(m)
            k = 0
            if extra and (dense or i % 2 == 1 or len(extra) >= len(mf) - i):
                lds(*extra.pop(0)); k = 1
            if gap > 0: gap -= 1
            while pending and k < 2 and gap == 0:
                o = pending.pop(0)
                if o[0] == 'gap': gap = o[1]; break
                emit_op(o)
                if o[0] in ('v', 'lds'): k += 1
    if STAMP == 1: A(f"s_memtime s[{CS[4]}:{CS[4]+1}]")
    pending += bg[16]
    while pending: emit_op(pending.pop(0))
    stamp(8); cstamp(19)
    if STAMP == 1:
        for i in range(5): A(f"v_writelane_b32 v{VSTAMP}, s{CS[i]}, {20+i}")
    A("s_waitcnt vmcnt(5)\ns_branch L_p2")

    A("L_nc_start:")
    sJD = sR0
    own_poison()
    A(f"s_cmp_ge_u32 s2, 240\ns_cbranch_scc1 L_nc_nop0")
    u_stores([PZ, PZ], 0); u_stores([PZ, PZ], 1)
    A(f"s_waitcnt vmcnt({14+5})")
    shift_consts()
    p0_addr()
    x_addr()
    A(f"s_waitcnt vmcnt({7+5})")
    p0_compute(0)
    if opt.get('ncf0e', 1):
        A(f"s_waitcnt vmcnt(0)\ns_barrier")
        arrive(F0_OFF)
    else:
        A(f"s_waitcnt vmcnt(5)")
    stamp(2)
    p0_compute(1)
    A(f"s_waitcnt {'' if opt.get('ncf0e', 1) else 'vmcnt(0) '}lgkmcnt(0)\ns_barrier")
    p0_readback(0); p0_readback(1)
    if not opt.get('ncf0e', 1): arrive(F0_OFF)
    A("s_waitcnt lgkmcnt(2)")
    u_stores([RB, RB+4], 0)
    A("s_waitcnt lgkmcnt(0)")
    u_stores([RB+8, RB+12], 1)
    stamp(3)
    x_loads()
    A("s_branch L_nc_w\nL_nc_nop0:")
    x_addr()
    x_loads()
    A(f"s_waitcnt vmcnt(6)\ns_barrier\ns_add_u32 s{sT3}, s{sTAG4}, 3")
    arrive(F1_OFF, sT3)
    A("L_nc_w:")
    PFPOS = opt.get('pfpos', 1); WPOS = opt.get('wpos', 2)
    SG_, SU_, SD_ = SKR, SK, SV
    srd(SG_, 24, 1966080); srd(SU_, 26, 1966080); srd(SD_, 28, 1966080)
    def w_prefetch():
        A(f"""
        s_mul_i32 s{sT}, s{sG}, 384
        s_mul_i32 s{sT2}, s{sMP}, {54*3072}
        s_add_u32 s{sT}, s{sT}, s{sT2}
        v_mul_u32_u24 v224, 21846, v0
        v_lshrrev_b32 v224, 16, v224
        v_mul_u32_u24 v225, 3, v224
        v_sub_u32 v225, v0, v225
        v_min_u32 v224, 53, v224
        v_mul_u32_u24 v224, 3072, v224
        v_lshl_add_u32 v224, v225, 7, v224
        s_cmp_lt_u32 s{sW}, 3
        s_cselect_b32 s{sT}, s{sT}, 0x7f000000
        buffer_load_dword v221, v224, s[{SG_}:{SG_+3}], s{sT} offen
        buffer_load_dword v222, v224, s[{SU_}:{SU_+3}], s{sT} offen
        s_mul_i32 s{sT}, s{sG}, 160
        s_and_b32 s{sT}, s{sT}, 0xffffff80
        s_mul_i32 s{sT2}, s{sMP}, {128*1280}
        s_add_u32 s{sT}, s{sT}, s{sT2}
        v_lshrrev_b32 v224, 1, v0
        v_and_b32 v225, 1, v0
        v_mul_u32_u24 v224, 1280, v224
        v_lshl_add_u32 v224, v225, 7, v224
        buffer_load_dword v223, v224, s[{SD_}:{SD_+3}], s{sT} offen
        """)
    if PFPOS == 0:
        w_prefetch()
        A("s_waitcnt vmcnt(3)")
    else:
        A("s_waitcnt vmcnt(0)")
    stamp(8)

    A("L_p2:")
    f1_load()
    XF, LF, XC, WF = 32, 52, 72, 208
    S0 = 92
    def xraw(t, p): return (XR0, XR1)[t] + p if p < 4 else (XS0, XS1)[t]
    def wr(p): return WR4 + p if p < 4 else WR1
    Z, Z1, ZE, ZM1, ZW = 2, 3, 218, 219, 220
    def unpack(dst, src):
        A(f"v_lshlrev_b32 v{dst}, 16, v{src}\nv_and_b32 v{dst+1}, s{sMASK}, v{src}")
    def reduceN(items, fill=None):
        fill = list(fill or [])
        def F(n):
            for _ in range(n):
                if fill: A(fill.pop(0))
        for d, t, a0, a1 in items:
            A(f"v_add_f32 v{d}, v{a0}, v{a0+1}\nv_add_f32 v{t}, v{a1}, v{a1+1}")
        F(max(0, 4 - 2*len(items)))
        for d, t, a0, a1 in items: A(f"v_permlane32_swap_b32 v{d}, v{t}")
        for d, t, a0, a1 in items: A(f"v_add_f32 v{d}, v{d}, v{t}")
        for m in ("quad_perm:[1,0,3,2] row_mask:0xf", "quad_perm:[2,3,0,1] row_mask:0xf", "row_half_mirror row_mask:0xf", "row_mirror row_mask:0xf", "row_bcast:15 row_mask:0xa"):
            F(max(0, 3 - len(items)))
            for d, t, a0, a1 in items: A(f"v_add_f32_dpp v{d}, v{d}, v{d} {m} bank_mask:0xf")
        return fill
    def rnd(r, d=None):
        d = r if d is None else d
        A(f"v_cvt_pk_bf16_f32 v{d}, v{r}, v{r}\nv_lshlrev_b32 v{d}, 16, v{d}")
    def rnd_pair(d, s_=None):
        s_ = d if s_ is None else s_
        return [f"v_cvt_pk_bf16_f32 v{d}, v{s_}, v{s_+1}", f"v_and_b32 v{d+1}, s{sMASK}, v{d}", f"v_lshlrev_b32 v{d}, 16, v{d}"]
    def rstd_chain(z, fill):
        rnd(z)
        A(f"v_add_f32 v{z}, {1e-5!r}, v{z}")
        rnd(z)
        A(f"v_sqrt_f32 v{z}, v{z}")
        if fill: A(fill.pop(0))
        rnd(z)
        A(f"v_rcp_f32 v{z}, v{z}")
        for f in fill: A(f)
    for t in range(2):
        for p in range(5): unpack(XF+10*t+2*p, xraw(t, p))
    for p in range(5): unpack(WF+2*p, wr(p))
    for t in range(2):
        A(f"v_pk_add_f32 {v(S0+2*t,2)}, {v(XF+10*t,2)}, {v(XF+10*t+2,2)}")
    A(f"v_pk_add_f32 {v(S0+4,2)}, {v(WF,2)}, {v(WF+2,2)}")
    for p in range(2, 5):
        for t in range(2):
            A(f"v_pk_add_f32 {v(S0+2*t,2)}, {v(S0+2*t,2)}, {v(XF+10*t+2*p,2)}")
        A(f"v_pk_add_f32 {v(S0+4,2)}, {v(S0+4,2)}, {v(WF+2*p,2)}")
    reduceN([(Z, Z1, S0, S0+2), (ZW, ZE, S0+4, S0+4)])
    A(f"v_mul_f32 v{Z}, {1.0/640!r}, v{Z}")
    rnd(Z, ZM1)
    A(f"""
    v_sub_f32 v{ZE}, v{Z}, v{ZM1}
    v_readlane_b32 s{sP0}, v{ZM1}, 16
    v_readlane_b32 s{sP1}, v{ZM1}, 48
    """)
    for p in range(5):
        for t in range(2):
            sp = (sP0, sP1)[t]; o = 10*t + 2*p
            A(f"v_pk_add_f32 {v(XC+o,2)}, {v(XF+o,2)}, s[{sp}:{sp+1}] op_sel_hi:[1,0] neg_lo:[0,1] neg_hi:[0,1]")
    for p in range(5):
        for t in range(2):
            d = v(XC+10*t+2*p, 2)
            if p == 0: A(f"v_pk_mul_f32 {v(S0+2*t,2)}, {d}, {d}")
            else: A(f"v_pk_fma_f32 {v(S0+2*t,2)}, {d}, {d}, {v(S0+2*t,2)}")
    fill = []
    for p in range(5):
        for t in range(2): fill += rnd_pair(LF+10*t+2*p, XC+10*t+2*p)
    fill = reduceN([(Z, Z1, S0, S0+2)], fill)
    A(f"v_mul_f32 v{Z}, {1.0/640!r}, v{Z}\nv_fma_f32 v{Z}, -v{ZE}, v{ZE}, v{Z}")
    rstd_chain(Z, fill)
    A(f"v_readlane_b32 s{sP0}, v{Z}, 16\nv_readlane_b32 s{sP1}, v{Z}, 48")
    for p in range(5):
        for t in range(2):
            sp = (sP0, sP1)[t]; o = 10*t + 2*p
            A(f"v_pk_mul_f32 {v(LF+o,2)}, {v(LF+o,2)}, s[{sp}:{sp+1}] op_sel_hi:[1,0]")
    for t in range(2):
        for p in range(5):
            for l in rnd_pair(LF+10*t+2*p): A(l)
    vKI, vKA, vKB = 8, 9, 10
    A(f"""
    v_lshrrev_b32 v{vKI}, 5, v1
    s_lshl_b32 s{sT}, s{sTAU}, 3
    s_lshl_b32 s{sT2}, s{sW}, 1
    s_add_u32 s{sT}, s{sT}, s{sT2}
    s_sub_u32 s{sT}, 2047, s{sT}
    s_lshl_b32 s{sT2}, s{sW}, 3
    s_add_u32 s{sT2}, s{sT2}, {L_S}
    v_lshl_add_u32 v{vKA}, v{vKI}, 2, s{sT2}
    v_sub_u32 v{vKI}, s{sT}, v{vKI}
    v_mov_b32 v{vKB}, {L_S}
    s_lshl_b32 s{sGO}, s{sTAU}, 7
    s_add_u32 s{sGO}, s{sGO}, {G_OFF}
    s_cmp_eq_u32 s{sW}, 0
    s_cselect_b32 s{sGO}, s{sGO}, {WS_SIZE}
    """)
    vYA, vPW, vPR, vPS = 4, 5, 6, 7
    YL = 100
    A(f"""
    v_lshrrev_b32 v{vYA}, 2, v0
    v_and_b32 v3, 3, v0
    v_lshlrev_b32 v{vYA}, 7, v{vYA}
    v_lshl_add_u32 v{vYA}, v3, 4, v{vYA}
    s_mul_i32 s{sYO}, s{sTB16}, 20480
    s_and_b32 s{sT}, s{sTAU}, 1
    s_lshl_b32 s{sT}, s{sT}, 6
    s_add_u32 s{sYO}, s{sYO}, s{sT}
    s_add_u32 s{sYO}, s{sYO}, {Y_OFF}
    s_add_u32 s{sY1}, s{sYO}, 8192
    s_add_u32 s{sY2}, s{sYO}, 16384
    s_cmp_lt_u32 s{sW}, 2
    s_cselect_b32 s{sY2}, s{sY2}, {WS_SIZE}
    v_lshlrev_b32 v{vPW}, 2, v0
    v_add_u32 v{vPW}, {L_P2}, v{vPW}
    s_mul_i32 s{sT}, s{sW}, 2560
    s_add_u32 s{sT}, s{sT}, {L_P2}
    v_lshl_add_u32 v{vPR}, v1, 5, s{sT}
    s_add_u32 s{sT}, s{sT}, 2048
    v_lshl_add_u32 v{vPS}, v1, 3, s{sT}
    s_mov_b32 s{sCNT}, 0
    """)
    stamp(9)
    PROBE = "" if opt.get('yp', 2) >= 2 else f"""
    s_cmp_lt_u32 s{sM}, 20
    s_cbranch_scc1 L_ypoll
    L_yprobe:
    s_mov_b64 exec, 1
    buffer_load_dword v{YL}, v{vYA}, s[{SWS}:{SWS+3}], s{sYO} offen sc1
    s_add_u32 s{sCNT}, s{sCNT}, 1
    s_cmp_gt_u32 s{sCNT}, {SPIN}
    s_waitcnt vmcnt(0)
    v_cmp_eq_u32 vcc, -1, v{YL}
    s_mov_b64 exec, -1
    s_cbranch_scc1 L_ypoll
    s_cbranch_vccz L_ypoll
    s_sleep 6
    s_branch L_yprobe
    """
    W4, W5, W6 = 221, 222, 223
    FL = 32 if WPOS else 100
    AG, AU, AD = 0, 40, 0
    def w_loads():
        A(f"s_cmp_lt_u32 s{sMP}, 11\ns_cbranch_scc0 L_wld_done")
        if not WPOS: A("s_waitcnt vmcnt(0)")
        A(f"""
        s_mul_i32 s{sJD}, s{sG}, 5
        s_add_u32 s{sJD}, s{sJD}, s{sMP}
        s_sub_u32 s{sJD}, s{sJD}, 6
        s_mul_i32 s{sT5}, s{sW}, 20480
        s_mov_b32 m0, s{sT5}
        s_cmp_lt_u32 s{sMP}, 6
        s_cbranch_scc0 L_prep_down
        v_lshrrev_b32 v2, 2, v1
        v_and_b32 v3, 3, v1
        s_mul_i32 s{sT}, s{sW}, {160*3072}
        s_lshl_b32 s{sT2}, s{sJ}, 6
        s_add_u32 s{sT}, s{sT}, s{sT2}
        v_mul_u32_u24 v{W4}, 3072, v2
        v_lshl_add_u32 v{W4}, v3, 4, v{W4}
        """)
        for mat in range(2):
            for i in range(10):
                A(f"buffer_load_dwordx4 v{W4}, s[{(SG_, SU_)[mat]}:{(SG_, SU_)[mat]+3}], s{sT} offen lds")
                if (mat, i) != (1, 9):
                    A(f"s_add_u32 m0, m0, 1024")
                    A(f"s_add_u32 s{sT}, s{sT}, {16*3072}" if i < 9 else f"s_sub_u32 s{sT}, s{sT}, {9*16*3072}")
        A(f"""
        v_lshrrev_b32 v2, 4, v1
        v_bfe_u32 v3, v1, 2, 2
        v_lshlrev_b32 v{W5}, 9, v2
        v_lshl_add_u32 v{W5}, v3, 6, v{W5}
        v_and_b32 v3, 3, v1
        v_lshl_add_u32 v{W5}, v3, 3, v{W5}
        v_add_u32 v{W5}, s{sT5}, v{W5}
        s_branch L_wld_done
        L_prep_down:
        v_lshrrev_b32 v2, 1, v1
        v_and_b32 v3, 1, v1
        s_mul_i32 s{sT}, s{sW}, {384*1280}
        s_lshl_b32 s{sT2}, s{sJD}, 5
        s_add_u32 s{sT}, s{sT}, s{sT2}
        v_mul_u32_u24 v{W4}, 1280, v2
        v_lshl_add_u32 v{W4}, v3, 4, v{W4}
        """)
        for i in range(12):
            A(f"buffer_load_dwordx4 v{W4}, s[{SD_}:{SD_+3}], s{sT} offen lds")
            if i < 11: A(f"s_add_u32 m0, m0, 1024\ns_add_u32 s{sT}, s{sT}, {32*1280}")
        A(f"""
        v_lshrrev_b32 v2, 4, v1
        v_bfe_u32 v3, v1, 2, 2
        v_lshlrev_b32 v{W5}, 8, v2
        v_lshl_add_u32 v{W5}, v3, 5, v{W5}
        v_and_b32 v3, 3, v1
        v_lshl_add_u32 v{W5}, v3, 3, v{W5}
        v_add_u32 v{W5}, s{sT5}, v{W5}
        L_wld_done:
        """)
    def w_stage(wait):
        A(f"s_cmp_lt_u32 s{sMP}, 11\ns_cbranch_scc0 L_wst_done")
        if wait: A("s_waitcnt vmcnt(0)")
        A(f"s_cmp_lt_u32 s{sMP}, 6\ns_cbranch_scc0 L_wst_down")
        for mat in range(2):
            for i in range(5):
                for ct in range(2):
                    r = (AG, AU)[mat] + 8*i + 4*ct
                    o = 10240*mat + 2048*i + 32*ct
                    A(f"ds_read_b64_tr_b16 {a(r,2)}, v{W5} offset:{o}")
                    A(f"ds_read_b64_tr_b16 {a(r+2,2)}, v{W5} offset:{o+256}")
        A(f"s_branch L_wst_done\nL_wst_down:")
        for i in range(12):
            A(f"ds_read_b64_tr_b16 {a(AD+4*i,2)}, v{W5} offset:{1024*i}")
            A(f"ds_read_b64_tr_b16 {a(AD+4*i+2,2)}, v{W5} offset:{1024*i+128}")
        A("L_wst_done:")
        stamp(1)
    if PFPOS == 1:
        A(f"s_cmp_lt_u32 s2, 160\ns_cbranch_scc1 L_nopf")
        w_prefetch()
        A("L_nopf:")
    if WPOS == 0:
        w_loads(); w_stage(True)
    A(f"""
    s_waitcnt vmcnt(0)
    v_subrev_u32 v{vB1}, s{sLO}, v{vB1}
    v_cmp_lt_u32 vcc, s{sRNG}, v{vB1}
    s_cbranch_vccz L_b1x
    L_b1:
    s_sleep 8
    s_mov_b64 exec, vcc
    buffer_load_dword v{vB1}, v{vB1A}, s[{SWS}:{SWS+3}], s{sT4} offen sc1
    s_add_u32 s{sCNT}, s{sCNT}, 1
    s_cmp_gt_u32 s{sCNT}, {SPIN}
    s_cbranch_scc1 L_b1x
    s_waitcnt vmcnt(0)
    v_subrev_u32 v{vB1}, s{sLO}, v{vB1}
    v_cmp_lt_u32 vcc, s{sRNG}, v{vB1}
    s_cbranch_vccnz L_b1
    L_b1x:
    s_mov_b64 exec, -1
    s_barrier
    {PROBE}
    L_ypoll:
    buffer_load_dwordx4 {v(YL,4)}, v{vYA}, s[{SWS}:{SWS+3}], s{sYO} offen sc1
    buffer_load_dwordx4 {v(YL+4,4)}, v{vYA}, s[{SWS}:{SWS+3}], s{sY1} offen sc1
    buffer_load_dwordx4 {v(YL+8,4)}, v{vYA}, s[{SWS}:{SWS+3}], s{sY2} offen sc1
    s_add_u32 s{sCNT}, s{sCNT}, 1
    s_cmp_gt_u32 s{sCNT}, {SPIN}
    s_cbranch_scc1 L_ypollx
    s_waitcnt vmcnt(2)
    v_max3_u32 v2, v{YL}, v{YL+1}, v{YL+2}
    s_waitcnt vmcnt(1)
    v_max3_u32 v2, v2, v{YL+3}, v{YL+4}
    v_max3_u32 v2, v2, v{YL+5}, v{YL+6}
    s_waitcnt vmcnt(0)
    v_max3_u32 v2, v2, v{YL+7}, v{YL+8}
    v_max3_u32 v2, v2, v{YL+9}, v{YL+10}
    v_max_u32 v2, v2, v{YL+11}
    v_cmp_eq_u32 vcc, -1, v2
    s_cbranch_vccnz L_ypoll
    L_ypollx:
    s_waitcnt vmcnt(0)
    """)
    stamp(10)
    for it in range(2):
        A(f"ds_write2st64_b32 v{vPW}, v{YL+4*it}, v{YL+4*it+1} offset0:{4*it} offset1:{10+4*it}")
        A(f"ds_write2st64_b32 v{vPW}, v{YL+4*it+2}, v{YL+4*it+3} offset0:{20+4*it} offset1:{30+4*it}")
    A(f"""
    s_cmp_lt_u32 s{sW}, 2
    s_cbranch_scc0 L_pw2
    ds_write2st64_b32 v{vPW}, v{YL+8}, v{YL+9} offset0:8 offset1:18
    ds_write2st64_b32 v{vPW}, v{YL+10}, v{YL+11} offset0:28 offset1:38
    L_pw2:
    s_waitcnt lgkmcnt(0)
    s_barrier
    """)
    Q, YF, HF, HP, LP, DF = 100, 110, 130, 150, 162, 224
    A(f"""
    ds_read_b128 {v(Q,4)}, v{vPR}
    ds_read_b128 {v(Q+4,4)}, v{vPR} offset:16
    ds_read_b64 {v(Q+8,2)}, v{vPS}
    """)
    def hp(t, p): return HP + 6*t + p
    def lp(t, p): return LP + 6*t + p
    SA, SB, SC = 92, 96, 244
    for p in range(5):
        if p in (0, 2, 4): A(f"s_waitcnt lgkmcnt({2 - p//2})")
        for i in (2*p, 2*p+1):
            A(f"v_lshlrev_b32 v{YF+i}, 16, v{Q+i}\nv_and_b32 v{YF+10+i}, s{sMASK}, v{Q+i}")
        for t in range(2):
            o = 10*t + 2*p
            A(f"v_pk_fma_f32 {v(HF+o,2)}, {v(LF+o,2)}, {v(YF+o,2)}, {v(XC+o,2)}")
        for t in range(2):
            o = 10*t + 2*p; h = v(HF+o, 2)
            if p == 0:
                A(f"v_pk_mul_f32 {v(SB+2*t,2)}, {h}, {h}\nv_pk_mul_f32 {v(SC+2*t,2)}, {h}, {v(WF,2)}")
            else:
                if p == 1: A(f"v_pk_add_f32 {v(SA+2*t,2)}, {v(HF+10*t,2)}, {h}")
                else: A(f"v_pk_add_f32 {v(SA+2*t,2)}, {v(SA+2*t,2)}, {h}")
                A(f"v_pk_fma_f32 {v(SB+2*t,2)}, {h}, {h}, {v(SB+2*t,2)}\nv_pk_fma_f32 {v(SC+2*t,2)}, {h}, {v(WF+2*p,2)}, {v(SC+2*t,2)}")
    ZA, ZB, ZC, ZT, ZM2 = 2, 248, 249, 250, 251
    reduceN([(ZA, 3, SA, SA+2), (ZB, ZT, SB, SB+2), (ZC, ZM2, SC, SC+2)])
    A(f"""
    v_mul_f32 v{ZA}, {1.0/640!r}, v{ZA}
    v_mul_f32 v{ZB}, {1.0/640!r}, v{ZB}
    v_add_f32 v{ZT}, v{ZA}, v{ZM1}
    v_fma_f32 v{ZB}, -v{ZA}, v{ZA}, v{ZB}
    v_max_f32 v{ZB}, 0, v{ZB}
    """)
    rstd_chain(ZB, [f"v_cvt_pk_bf16_f32 v{ZM2}, v{ZT}, v{ZT}", f"v_lshlrev_b32 v{ZM2}, 16, v{ZM2}",
                    f"v_sub_f32 v{ZT}, v{ZM2}, v{ZM1}", f"v_fma_f32 v{ZC}, -v{ZT}, v{ZW}, v{ZC}"])
    KK = 174
    A(f"""
    v_mul_f32 v{Z}, v{ZC}, v{ZB}
    v_cvt_pk_bf16_f32 v{Z}, v{Z}, v{Z}
    v_ashrrev_i32 v{Z1}, 31, v{Z}
    v_or_b32 v{Z1}, 0x80000000, v{Z1}
    v_xor_b32 v{Z}, v{Z}, v{Z1}
    v_and_or_b32 v{Z}, v{Z}, s{sMASK}, v{vKI}
    s_mov_b32 exec_lo, 0x10000
    s_mov_b32 exec_hi, 0x10000
    ds_write_b32 v{vKA}, v{Z}
    s_mov_b64 exec, -1
    v_readlane_b32 s{sP0}, v{ZM2}, 16
    v_readlane_b32 s{sP1}, v{ZM2}, 48
    v_readlane_b32 s{sQ0}, v{ZB}, 16
    v_readlane_b32 s{sQ1}, v{ZB}, 48
    s_waitcnt lgkmcnt(0)
    s_barrier
    ds_read_b128 {v(KK,4)}, v{vKB}
    ds_read_b128 {v(KK+4,4)}, v{vKB} offset:16
    """)
    ex = []
    for p in range(5):
        for t in range(2):
            o = 10*t + 2*p
            if EXA:
                ex.append(f"v_pk_mul_f32 {v(YF+o,2)}, {v(LF+o,2)}, {v(YF+o,2)}")
                ex += rnd_pair(YF+o)
                ex.append(f"v_pk_add_f32 {v(YF+o,2)}, {v(XF+o,2)}, {v(YF+o,2)}")
            else:
                ex.append(f"v_pk_fma_f32 {v(YF+o,2)}, {v(LF+o,2)}, {v(YF+o,2)}, {v(XF+o,2)}")
            ex += [f"v_cvt_pk_bf16_f32 v{hp(t,p)}, v{YF+o}, v{YF+o+1}", f"v_lshlrev_b32 v{HF+o}, 16, v{hp(t,p)}", f"v_and_b32 v{HF+o+1}, s{sMASK}, v{hp(t,p)}"]
            sp = (sP0, sP1)[t]; sq = (sQ0, sQ1)[t]
            ex.append(f"v_pk_add_f32 {v(DF+o,2)}, {v(HF+o,2)}, s[{sp}:{sp+1}] op_sel_hi:[1,0] neg_lo:[0,1] neg_hi:[0,1]")
            if EXD: ex += rnd_pair(DF+o)
            ex.append(f"v_pk_mul_f32 {v(DF+o,2)}, {v(DF+o,2)}, s[{sq}:{sq+1}] op_sel_hi:[1,0]")
            ex.append(f"v_cvt_pk_bf16_f32 v{lp(t,p)}, v{DF+o}, v{DF+o+1}")
    for _ in range(8): A(ex.pop(0))
    A(f"""
    s_waitcnt lgkmcnt(1)
    v_max_u32 v{KK+8}, v{KK}, v{KK+1}
    v_min_u32 v{KK+9}, v{KK}, v{KK+1}
    """)
    for i in range(2, 8):
        if i == 4: A("s_waitcnt lgkmcnt(0)")
        A(f"v_med3_u32 v{KK+9}, v{KK+8}, v{KK+9}, v{KK+i}\nv_max_u32 v{KK+8}, v{KK+8}, v{KK+i}")
    A(f"""
    s_mov_b64 exec, 1
    buffer_store_dwordx2 {v(KK+8,2)}, off, s[{SWS}:{SWS+3}], s{sGO} sc1
    s_mov_b64 exec, -1
    v_readfirstlane_b32 s{sK1}, v{KK+8}
    v_readfirstlane_b32 s{sK2}, v{KK+9}
    """)
    stamp(11)
    if WPOS == 2: w_loads()
    for l in ex: A(l)
    vRA, vRB = 4, 5
    A(f"v_lshlrev_b32 v{vRA}, 4, v1\nv_lshlrev_b32 v{vRB}, 2, v1\nv_add_u32 v{vRB}, 1024, v{vRB}")
    def publish(src, off, tagname):
        SEL = 184
        for slot, sk in enumerate((sK1, sK2)):
            A(f"""
            s_not_b32 s{sT}, s{sk}
            s_bfe_u32 s{sT2}, s{sT}, 0x20001
            s_cmp_eq_u32 s{sT2}, s{sW}
            s_cbranch_scc0 L_{tagname}{slot}
            s_bitcmp1_b32 s{sT}, 0
            s_cselect_b64 s[{sE0}:{sE0+1}], -1, 0
            s_mul_i32 s{sT3}, s{sTAU}, 2560
            s_add_u32 s{sT3}, s{sT3}, {off + 1280*slot}
            """)
            for p in range(5):
                A(f"v_cndmask_b32 v{SEL+6*slot+p}, v{src+p}, v{src+6+p}, s[{sE0}:{sE0+1}]")
            A(f"""
            buffer_store_dwordx4 {v(SEL+6*slot,4)}, v{vRA}, s[{SWS}:{SWS+3}], s{sT3} offen sc1
            buffer_store_dword v{SEL+6*slot+4}, v{vRB}, s[{SWS}:{SWS+3}], s{sT3} offen sc1
            L_{tagname}{slot}:
            """)
    publish(LP, R_OFF, 'pl')
    OP = 196
    for p in range(5):
        for t in range(2):
            o = 10*t + 2*p
            unpack(DF+o, lp(t, p))
            A(f"v_pk_add_f32 {v(DF+o,2)}, {v(DF+o,2)}, {v(HF+o,2)}")
            A(f"v_cvt_pk_bf16_f32 v{OP+6*t+p}, v{DF+o}, v{DF+o+1}")
    A(f"""
    buffer_store_dwordx4 {v(OP,4)}, v{vXA}, s[{SOUT}:{SOUT+3}], 0 offen sc1
    buffer_store_dword v{OP+4}, v{vXB}, s[{SOUT}:{SOUT+3}], 0 offen sc1
    buffer_store_dwordx4 {v(OP+6,4)}, v{vXA}, s[{SOUT}:{SOUT+3}], 0 offen offset:1280 sc1
    buffer_store_dword v{OP+10}, v{vXB}, s[{SOUT}:{SOUT+3}], 0 offen offset:1280 sc1
    """)
    publish(HP, H_OFF, 'ph')
    if WPOS == 1: w_loads()
    A(f"""
    s_waitcnt vmcnt(0)
    s_barrier
    s_lshl_b32 s{sT}, s{sTAU}, 7
    s_add_u32 s{sT}, s{sT}, {D_OFF}
    s_cmp_eq_u32 s{sW}, 0
    s_cselect_b32 s{sT}, s{sT}, {WS_SIZE}
    v_mov_b32 v2, 1
    s_mov_b64 exec, 1
    buffer_store_dword v2, off, s[{SWS}:{SWS+3}], s{sT} sc1
    s_mov_b64 exec, -1
    """)
    stamp(12)
    if WPOS >= 1: w_stage(False)
    A(f"s_cmp_lt_u32 s{sMP}, 11\ns_cbranch_scc0 L_fin")
    K1, K2, T1, T2 = 32, 33, 34, 35
    A(f"""
    v_lshlrev_b32 v4, 7, v0
    s_mov_b32 s{sT}, {G_OFF}
    s_mov_b32 s{sCNT}, 0
    L_gpoll:
    buffer_load_dwordx2 {v(K1,2)}, v4, s[{SWS}:{SWS+3}], s{sT} offen sc1
    s_add_u32 s{sCNT}, s{sCNT}, 1
    s_cmp_gt_u32 s{sCNT}, {SPIN}
    s_cbranch_scc1 L_gpollx
    s_waitcnt vmcnt(0)
    v_max_u32 v2, v{K1}, v{K2}
    v_cmp_eq_u32 vcc, -1, v2
    s_and_b64 exec, exec, vcc
    s_cbranch_execnz L_gpoll
    L_gpollx:
    s_mov_b64 exec, -1
    s_waitcnt vmcnt(0)
    """)
    stamp(13)
    def merge_rows():
        for m in ("quad_perm:[1,0,3,2]", "quad_perm:[2,3,0,1]", "row_half_mirror", "row_mirror"):
            A(f"""
            v_min_u32_dpp v{T1}, v{K1}, v{K1} {m} row_mask:0xf bank_mask:0xf
            v_max_u32_dpp v{T2}, v{K2}, v{K2} {m} row_mask:0xf bank_mask:0xf
            v_max_u32_dpp v{K1}, v{K1}, v{K1} {m} row_mask:0xf bank_mask:0xf
            v_max_u32 v{K2}, v{T1}, v{T2}
            """)
    merge_rows()
    A(f"""
    v_lshrrev_b32 v5, 4, v0
    v_lshlrev_b32 v5, 3, v5
    v_add_u32 v5, {L_S+64}, v5
    v_and_b32 v6, 15, v1
    v_lshlrev_b32 v6, 3, v6
    v_add_u32 v6, {L_S+64}, v6
    ds_write_b64 v5, {v(K1,2)}
    s_waitcnt lgkmcnt(0)
    s_barrier
    ds_read_b64 {v(K1,2)}, v6
    s_waitcnt lgkmcnt(0)
    """)
    merge_rows()
    sTA, sTB, sRA, sRB = sP0, sP0+1, sP1, sP1+1
    A(f"""
    v_readfirstlane_b32 s{sK1}, v{K1}
    v_readfirstlane_b32 s{sK2}, v{K2}
    s_not_b32 s{sTA}, s{sK1}
    s_and_b32 s{sTA}, s{sTA}, 0x7ff
    s_not_b32 s{sTB}, s{sK2}
    s_and_b32 s{sTB}, s{sTB}, 0x7ff
    s_lshr_b32 s{sT}, s{sTA}, 3
    s_lshr_b32 s{sT2}, s{sTB}, 3
    s_mul_i32 s{sRA}, s{sT}, 2560
    s_mul_i32 s{sRB}, s{sT2}, 2560
    s_cmp_eq_u32 s{sT}, s{sT2}
    s_cselect_b32 s{sT3}, 1280, 0
    s_add_u32 s{sRB}, s{sRB}, s{sT3}
    s_cmp_lt_u32 s{sMP}, 6
    s_cbranch_scc0 L_down
    v_and_b32 v2, 1, v1
    v_cmp_eq_u32 vcc, 1, v2
    v_mov_b32 v7, s{sRA}
    v_mov_b32 v8, s{sRB}
    v_cndmask_b32 v7, v7, v8, vcc
    v_lshrrev_b32 v3, 4, v1
    v_lshl_add_u32 v7, v3, 4, v7
    s_mul_i32 s{sT3}, s{sW}, 320
    s_add_u32 s{sT3}, s{sT3}, {R_OFF}
    s_mov_b32 s{sCNT}, 0
    L_xpoll:
    """)
    XS = 40
    for i in range(5):
        A(f"buffer_load_dwordx4 {v(XS+4*i,4)}, v7, s[{SWS}:{SWS+3}], s{sT3} offen offset:{64*i} sc1")
    A(f"""
    s_add_u32 s{sCNT}, s{sCNT}, 1
    s_cmp_gt_u32 s{sCNT}, {SPIN}
    s_cbranch_scc1 L_xpollx
    s_waitcnt vmcnt(0)
    v_max3_u32 v2, v{XS}, v{XS+1}, v{XS+2}
    """)
    for i in range(3, 19, 2): A(f"v_max3_u32 v2, v2, v{XS+i}, v{XS+i+1}")
    A(f"""
    v_max_u32 v2, v2, v{XS+19}
    v_cmp_eq_u32 vcc, -1, v2
    s_cbranch_vccnz L_xpoll
    L_xpollx:
    s_waitcnt vmcnt(0)
    """)
    stamp(14)
    DG, DU = 64, 72
    for i in range(5):
        for ct in range(2):
            A(f"v_mfma_f32_16x16x32_bf16 {v(DG+4*ct,4)}, {a(AG+8*i+4*ct,4)}, {v(XS+4*i,4)}, {v(DG+4*ct,4) if i else 0}")
            A(f"v_mfma_f32_16x16x32_bf16 {v(DU+4*ct,4)}, {a(AU+8*i+4*ct,4)}, {v(XS+4*i,4)}, {v(DU+4*ct,4) if i else 0}")
    L_F = L_P2
    PG = 80
    A(f"""
    v_and_b32 v2, 15, v1
    v_lshlrev_b32 v5, 7, v2
    v_lshl_add_u32 v5, v3, 4, v5
    s_lshl_b32 s{sT}, s{sW}, 9
    s_add_u32 s{sT}, s{sT}, {L_F}
    v_add_u32 v5, s{sT}, v5
    v_lshlrev_b32 v6, 2, v1
    v_add_u32 v6, {L_F}, v6
    s_mov_b32 exec_lo, 0x00030003
    s_mov_b32 exec_hi, 0x00030003
    ds_write_b128 v5, {v(DG,4)}
    ds_write_b128 v5, {v(DU,4)} offset:256
    ds_write_b128 v5, {v(DG+4,4)} offset:64
    ds_write_b128 v5, {v(DU+4,4)} offset:320
    s_mov_b64 exec, -1
    s_waitcnt lgkmcnt(0)
    s_barrier
    s_cmp_eq_u32 s{sW}, 0
    s_cbranch_scc0 L_fin
    """)
    for w in range(4):
        A(f"ds_read2st64_b32 {v(PG+2*w,2)}, v6 offset0:{2*w} offset1:{2*w+1}")
    A(f"""
    s_lshl_b32 s{sT}, s{sJ}, 7
    s_add_u32 s{sT}, s{sT}, {A_OFF}
    v_lshlrev_b32 v6, 1, v1
    s_waitcnt lgkmcnt(2)
    v_pk_add_f32 {v(PG,2)}, {v(PG,2)}, {v(PG+2,2)}
    s_waitcnt lgkmcnt(0)
    v_pk_add_f32 {v(PG+4,2)}, {v(PG+4,2)}, {v(PG+6,2)}
    v_pk_add_f32 {v(PG,2)}, {v(PG,2)}, {v(PG+4,2)}
    v_cvt_pk_bf16_f32 v{PG}, v{PG}, v{PG+1}
    v_and_b32 v{PG+1}, s{sMASK}, v{PG}
    v_lshlrev_b32 v{PG}, 16, v{PG}
    v_mul_f32 v{PG+2}, {-1.4426950408889634!r}, v{PG}
    v_exp_f32 v{PG+2}, v{PG+2}
    v_add_f32 v{PG+2}, 1.0, v{PG+2}
    v_rcp_f32 v{PG+2}, v{PG+2}
    v_mul_f32 v{PG}, v{PG}, v{PG+2}
    v_cvt_pk_bf16_f32 v{PG}, v{PG}, v{PG}
    v_lshlrev_b32 v{PG}, 16, v{PG}
    v_mul_f32 v{PG}, v{PG}, v{PG+1}
    v_mov_b32_dpp v{PG+1}, v{PG} quad_perm:[1,0,3,2] row_mask:0xf bank_mask:0xf
    v_cvt_pk_bf16_f32 v{PG}, v{PG}, v{PG+1}
    s_mov_b32 exec_lo, 0x55555555
    s_mov_b32 exec_hi, 0x55555555
    buffer_store_dword v{PG}, v6, s[{SWS}:{SWS+3}], s{sT} offen sc1
    s_mov_b64 exec, -1
    """)
    stamp(15)
    A("s_branch L_fin\nL_down:")
    vTK, vLN, vHH, vSG, vOA = 88, 89, 90, 91, 92
    DU = DG + 4
    A(f"""
    s_cmp_eq_u32 s{sW}, 0
    s_cbranch_scc0 L_nofin
    v_bfe_u32 v2, v1, 4, 1
    v_cmp_eq_u32 vcc, 1, v2
    v_mov_b32 v5, s{sTA}
    v_mov_b32 v6, s{sTB}
    v_cndmask_b32 v{vTK}, v5, v6, vcc
    v_mov_b32 v5, s{sRA}
    v_mov_b32 v6, s{sRB}
    v_cndmask_b32 v8, v5, v6, vcc
    v_mov_b32 v5, s{sK1}
    v_mov_b32 v6, s{sK2}
    v_cndmask_b32 v{vSG}, v5, v6, vcc
    v_lshrrev_b32 v9, 3, v{vTK}
    v_lshlrev_b32 v9, 7, v9
    s_mov_b32 s{sT}, {D_OFF}
    s_mov_b32 s{sCNT}, 0
    L_dpoll:
    buffer_load_dword v10, v9, s[{SWS}:{SWS+3}], s{sT} offen sc1
    s_add_u32 s{sCNT}, s{sCNT}, 1
    s_cmp_gt_u32 s{sCNT}, {SPIN}
    s_cbranch_scc1 L_dpollx
    s_waitcnt vmcnt(0)
    v_cmp_ne_u32 vcc, 1, v10
    s_cbranch_vccnz L_dpoll
    L_dpollx:
    v_and_b32 v2, 15, v1
    s_lshl_b32 s{sT}, s{sJD}, 5
    v_lshl_add_u32 v2, v2, 1, s{sT}
    v_add_u32 v8, v8, v2
    s_mov_b32 s{sT}, {R_OFF}
    s_mov_b32 s{sT2}, {H_OFF}
    buffer_load_ushort v{vLN}, v8, s[{SWS}:{SWS+3}], s{sT} offen sc1
    buffer_load_ushort v{vHH}, v8, s[{SWS}:{SWS+3}], s{sT2} offen sc1
    v_mul_u32_u24 v{vOA}, 1280, v{vTK}
    v_add_u32 v{vOA}, v{vOA}, v2
    v_not_b32 v5, v{vSG}
    v_ashrrev_i32 v5, 31, v5
    v_or_b32 v5, 0x80000000, v5
    v_xor_b32 v{vSG}, v{vSG}, v5
    v_and_b32 v{vSG}, s{sMASK}, v{vSG}
    v_mul_f32 v{vSG}, {-1.4426950408889634!r}, v{vSG}
    v_exp_f32 v{vSG}, v{vSG}
    v_add_f32 v{vSG}, 1.0, v{vSG}
    v_rcp_f32 v{vSG}, v{vSG}
    v_cvt_pk_bf16_f32 v{vSG}, v{vSG}, v{vSG}
    v_lshlrev_b32 v{vSG}, 16, v{vSG}
    L_nofin:
    v_and_b32 v2, 1, v1
    v_lshlrev_b32 v7, 6, v2
    v_lshrrev_b32 v2, 4, v1
    v_lshl_add_u32 v7, v2, 4, v7
    s_mul_i32 s{sT3}, s{sW}, {12*128}
    s_add_u32 s{sT3}, s{sT3}, {A_OFF}
    s_mov_b32 s{sCNT}, 0
    L_apoll:
    """)
    AS = 96
    for i in range(12):
        A(f"buffer_load_dwordx4 {v(AS+4*i,4)}, v7, s[{SWS}:{SWS+3}], s{sT3} offen offset:{128*i} sc1")
    A(f"""
    s_add_u32 s{sCNT}, s{sCNT}, 1
    s_cmp_gt_u32 s{sCNT}, {SPIN}
    s_cbranch_scc1 L_apollx
    s_waitcnt vmcnt(0)
    v_max3_u32 v2, v{AS}, v{AS+1}, v{AS+2}
    """)
    for i in range(3, 47, 2): A(f"v_max3_u32 v2, v2, v{AS+i}, v{AS+i+1}")
    A(f"""
    v_max_u32 v2, v2, v{AS+47}
    v_cmp_eq_u32 vcc, -1, v2
    s_cbranch_vccnz L_apoll
    L_apollx:
    s_waitcnt vmcnt(0)
    """)
    stamp(16)
    for i in range(12):
        d = DG + 4*(i % 2)
        A(f"v_mfma_f32_16x16x32_bf16 {v(d,4)}, {a(AD+4*i,4)}, {v(AS+4*i,4)}, {v(d,4) if i > 1 else 0}")
    L_D = L_S + 1280
    A(f"""
    v_and_b32 v2, 15, v1
    v_lshrrev_b32 v3, 4, v1
    v_lshlrev_b32 v5, 6, v2
    v_lshl_add_u32 v5, v3, 4, v5
    s_lshl_b32 s{sT}, s{sW}, 7
    s_add_u32 s{sT}, s{sT}, {L_D}
    v_add_u32 v5, s{sT}, v5
    v_lshlrev_b32 v6, 2, v1
    v_add_u32 v6, {L_D}, v6
    v_pk_add_f32 {v(DG,2)}, {v(DG,2)}, {v(DU,2)}
    v_pk_add_f32 {v(DG+2,2)}, {v(DG+2,2)}, {v(DU+2,2)}
    s_mov_b32 exec_lo, 0x00030003
    s_mov_b32 exec_hi, 0x00030003
    ds_write_b128 v5, {v(DG,4)}
    s_mov_b64 exec, -1
    s_waitcnt lgkmcnt(0)
    s_barrier
    s_cmp_eq_u32 s{sW}, 0
    s_cbranch_scc0 L_fin
    ds_read2_b32 {v(PG,2)}, v6 offset0:0 offset1:32
    ds_read2_b32 {v(PG+2,2)}, v6 offset0:64 offset1:96
    v_lshlrev_b32 v{vLN}, 16, v{vLN}
    v_lshlrev_b32 v{vHH}, 16, v{vHH}
    s_waitcnt lgkmcnt(0)
    v_pk_add_f32 {v(PG,2)}, {v(PG,2)}, {v(PG+2,2)}
    v_add_f32 v{PG}, v{PG}, v{PG+1}
    """)
    rnd(PG)
    A(f"v_mul_f32 v{PG}, v{PG}, v{vSG}")
    rnd(PG)
    A(f"v_add_f32 v{PG}, v{PG}, v{vLN}")
    rnd(PG)
    A(f"""
    v_add_f32 v{PG}, v{PG}, v{vHH}
    v_mov_b32_dpp v{PG+1}, v{PG} quad_perm:[1,0,3,2] row_mask:0xf bank_mask:0xf
    v_cvt_pk_bf16_f32 v{PG}, v{PG}, v{PG+1}
    s_mov_b32 exec_lo, 0x55555555
    s_mov_b32 exec_hi, 0
    buffer_store_dword v{PG}, v{vOA}, s[{SOUT}:{SOUT+3}], 0 offen sc1
    s_mov_b32 s{sT}, {E_OFF}
    s_cmp_eq_u32 s{sJD}, 0
    s_cselect_b32 s{sT}, s{sT}, {WS_SIZE}
    v_mov_b32 v2, s{sTAG}
    s_mov_b64 exec, 1
    buffer_store_dword v2, off, s[{SWS}:{SWS+3}], s{sT} sc1
    s_mov_b64 exec, -1
    """)
    A("L_fin:")
    if STAMP:
        stamp(17)
        A(f"""
        s_lshl_b32 s{sT}, s2, 10
        s_lshl_b32 s{sT2}, s{sW}, 8
        s_add_u32 s{sT}, s{sT}, s{sT2}
        s_add_u32 s{sT}, s{sT}, {T_OFF}
        v_lshlrev_b32 v2, 2, v1
        buffer_store_dword v{VSTAMP}, v2, s[{SWS}:{SWS+3}], s{sT} offen
        """)
    if STAMP == 2:
        sel = [0, 0, 2, 3, 7, 8, 10, 11, 12, 13, 14, 15, 16, 17, 1, 6]
        A(f"v_mov_b32 v4, 0")
        for i, t in enumerate(sel):
            A(f"v_readlane_b32 s{sT}, v{VSTAMP}, {t}")
            if i == 0: A(f"s_not_b32 s{sT}, s{sT}")
            A(f"s_nop 3\nv_writelane_b32 v4, s{sT}, {i}")
        A(f"s_mov_b64 exec, 0xffff\nv_lshlrev_b32 v2, 2, v1\nbuffer_atomic_umax v4, v2, s[{SDBG}:{SDBG+3}], 0 offen sc1")
    A("L_end:\ns_endpgm")
    for t in slow: A(t)
    A("L_code_end:")
    npad = A.pad()
    hdr = open(os.path.join(os.path.dirname(os.path.abspath(__file__)), 'header.txt')).read()
    out = hdr + f"; @launch grid=(256,1,1) block=(256,1,1) lds={LDS_SIZE}\n"
    out += f""".amdgcn_target "amdgcn-amd-amdhsa--gfx950"
.text
.globl {NAME}
.p2align 8
.type {NAME},@function
"""
    out += A.text()
    out += f""".section .rodata,"a"
.p2align 6
.amdhsa_kernel {NAME}
  .amdhsa_next_free_vgpr 512
  .amdhsa_next_free_sgpr 102
  .amdhsa_accum_offset 256
  .amdhsa_group_segment_fixed_size 0
  .amdhsa_kernarg_size 112
  .amdhsa_user_sgpr_count 2
  .amdhsa_user_sgpr_kernarg_segment_ptr 1
  .amdhsa_system_sgpr_workgroup_id_x 1
  .amdhsa_float_denorm_mode_32 3
.end_amdhsa_kernel
"""
    return out, npad

if __name__ == "__main__":
    opt = {}
    outp = None
    for arg in sys.argv[1:]:
        if '=' in arg:
            k, val = arg.split('='); opt[k] = int(val)
        else:
            outp = arg
    txt, npad = build(opt)
    open(outp or "sequential_preLN__ssm_conv_h3__moe_arch_mod__prompt.s", "w").write(txt)
    print("nops inserted:", npad, "lines:", txt.count("\n"))
```
